```python
import torch

def _softmax(x, axis=-1):
    return torch.softmax(x, dim=axis)
def _gelu(x):
    return torch.nn.functional.gelu(x, approximate="tanh")
def _silu(x):
    return torch.nn.functional.silu(x)
def _sigmoid(x):
    return torch.sigmoid(x)
def _layernorm(x, axis=-1, eps=1e-5):
    m = x.mean(dim=axis, keepdim=True)
    v = x.var(dim=axis, keepdim=True, unbiased=False)
    return (x - m) / torch.sqrt(v + eps)
def _scatter_add(tgt, idx, src, axis=0):
    return tgt.clone().index_add_(axis, idx, src)
def _segment_sum(src, seg, n):
    out = torch.zeros((n,) + src.shape[1:], dtype=src.dtype)
    return out.index_add_(0, seg, src)
def _pad(x, pw):
    flat = tuple(v for pair in reversed(pw) for v in pair)
    return torch.nn.functional.pad(x, flat)

kernel_name = 'concat_heads__linear_attn_block__sliding_local_dilated__prompt'

def setup_inputs():

    _w = (lambda a: (lambda t: t.to(torch.bfloat16) if t.is_floating_point() else t)(torch.as_tensor(a)))
    def _A_setup():
        B, S, D = 1, 2048, 512
        return {
            "x": _w((lambda *s: torch.randn(*s, dtype=torch.bfloat16) * 0.05)(B, S, D)),
            "wqkv": _w((lambda *s: torch.randn(*s, dtype=torch.bfloat16) * 1.6)(D, 3 * D)),
            "wo": _w((lambda *s: torch.randn(*s, dtype=torch.bfloat16) * 0.8)(D, D)),
        }
    _A_in = _A_setup()

    def _B_setup():
        B, S, D = 1, 2048, 512
        return {
            "x": _w((lambda *s: torch.randn(*s, dtype=torch.bfloat16) * 0.2)(B, S, D)),
            "wqkv": _w((lambda *s: torch.randn(*s, dtype=torch.bfloat16) * 0.2)(D, 3 * D)),
            "wo": _w((lambda *s: torch.randn(*s, dtype=torch.bfloat16) * 0.05)(D, D)),
        }
    _B_in = _B_setup()

    return {
        "A_x": _A_in["x"],
        "A_wqkv": _A_in["wqkv"],
        "A_wo": _A_in["wo"],
        "B_x": _B_in["x"],
        "B_wqkv": _B_in["wqkv"],
        "B_wo": _B_in["wo"],
    }

def reference(A_x, A_wqkv, A_wo, B_x, B_wqkv, B_wo):
    def _A_ref(x, wqkv, wo):
        B, S, D = x.shape
        H = 32; Dh = D // H
        qkv = (lambda x, *d: x.permute(*d))((x @ wqkv).reshape(B, S, 3, H, Dh), 2, 0, 3, 1, 4)
        q, k, v = qkv[0], qkv[1], qkv[2]
        phi = lambda t: torch.where(t > 0, t + 1, torch.exp(t)) + 1e-6
        pq, pk = phi(q), phi(k)
        kv = torch.einsum("bhsd,bhse->bhde", pk, v)
        z = torch.einsum("bhsd->bhd", pk)
        num = torch.einsum("bhqd,bhde->bhqe", pq, kv)
        den = torch.einsum("bhqd,bhd->bhq", pq, z)[..., None] + 1e-6
        o = num / den
        return (lambda x, *d: x.permute(*d))(o, 0, 2, 1, 3).reshape(B, S, D) @ wo

    def _B_ref(x, wqkv, wo):
        B, S, D = x.shape
        H = 32; Dh = D // H
        W, dil = 8, 2
        qkv = (lambda x, *d: x.permute(*d))((x @ wqkv).reshape(B, S, 3, H, Dh), 2, 0, 3, 1, 4)
        q, k, v = qkv[0], qkv[1], qkv[2]
        scale = Dh ** -0.5
        pos = torch.arange(S)
        off = torch.arange(W) * dil
        idx = pos[:, None] - off[None, :]
        mask = idx >= 0
        idx_c = torch.where(mask, idx, 0).reshape(-1)
        kg = k[:, :, idx_c, :].reshape(B, H, S, W, Dh)
        vg = v[:, :, idx_c, :].reshape(B, H, S, W, Dh)
        logits = torch.einsum("bhsd,bhswd->bhsw", q, kg) * scale
        logits = torch.where(mask[None, None, :, :], logits, -1e9)
        attn = _softmax(logits, axis=-1)
        o = torch.einsum("bhsw,bhswd->bhsd", attn, vg)
        return (lambda x, *d: x.permute(*d))(o, 0, 2, 1, 3).reshape(B, S, D) @ wo

    a = _A_ref(A_x, A_wqkv, A_wo)
    b = _B_ref(B_x, B_wqkv, B_wo)
    return torch.concatenate([a, b], axis=-1)
```

```python
import re

REG_RE = re.compile(r'^(-?)(abs\()?([vas])(\d+|\[(\d+):(\d+)\])\)?$')

def regs_of(op):
    op = op.strip()
    if op in ("vcc",): return [("s", "vcc")]
    if op == "exec": return [("s", "exec")]
    if op == "m0": return [("s", "m0")]
    m = REG_RE.match(op)
    if not m: return []
    k = m.group(3)
    if m.group(5) is not None:
        return [(k, i) for i in range(int(m.group(5)), int(m.group(6)) + 1)]
    return [(k, int(m.group(4)))]

TRANS = ("v_exp_f32", "v_log_f32", "v_rcp_f32", "v_rsq_f32", "v_sqrt_f32", "v_sin_f32", "v_cos_f32")

class Ins:
    __slots__ = ("text", "mn", "ops", "kind", "wr", "rd", "rdA", "rdC", "nstates", "mods")
    def __init__(self, text):
        self.text = text
        t = text.split(";")[0].strip()
        self.nstates = 1
        self.wr = []; self.rd = []; self.rdA = []; self.rdC = []
        if t.endswith(":") or not t or t.startswith("."):
            self.kind = "label"; self.mn = t; self.ops = []; self.nstates = 0; self.mods = ""; return
        p = t.split(None, 1)
        self.mn = p[0]
        rest = p[1] if len(p) > 1 else ""
        ops = []; cur = ""; depth = 0
        for ch in rest:
            if ch in "[(": depth += 1
            if ch in "])": depth -= 1
            if ch == "," and depth == 0: ops.append(cur.strip()); cur = ""
            else: cur += ch
        if cur.strip(): ops.append(cur.strip())
        self.mods = ""
        if ops:
            last = ops[-1].split(None, 1)
            if len(last) > 1: ops[-1] = last[0]; self.mods = last[1]
        self.ops = ops
        mn = self.mn
        R = lambda i: regs_of(ops[i]) if i < len(ops) else []
        allr = lambda a: [r for i in range(a, len(ops)) for r in regs_of(ops[i])]
        if mn.startswith("v_mfma"):
            self.kind = "mfma"; self.wr = R(0); self.rdA = R(1) + R(2); self.rdC = R(3); self.rd = self.rdA + self.rdC
        elif mn.startswith("v_"):
            self.kind = "valu"
            if mn.startswith("v_permlane") and "swap" in mn:
                self.wr = R(0) + R(1); self.rd = R(0) + R(1)
            elif mn.startswith("v_swap"):
                self.wr = R(0) + R(1); self.rd = R(0) + R(1)
            elif mn.startswith("v_cmp"):
                self.wr = R(0); self.rd = allr(1)
            elif mn.startswith(("v_add_co", "v_sub_co", "v_addc_co", "v_subb_co")):
                self.wr = R(0) + R(1); self.rd = allr(2)
            else:
                self.wr = R(0); self.rd = allr(1)
                if mn.startswith(("v_fmac", "v_pk_fmac", "v_dot2c", "v_writelane")): self.rd += R(0)
                if mn.startswith("v_cndmask") and len(ops) == 3: self.rd += [("s", "vcc")]
        elif mn.startswith("ds_"):
            self.kind = "ds"
            if mn.startswith(("ds_read", "ds_bpermute", "ds_permute", "ds_swizzle")): self.wr = R(0); self.rd = allr(1)
            else: self.rd = allr(0)
        elif mn.startswith(("buffer_", "global_")):
            self.kind = "vmem"
            lds = re.search(r'\blds\b', self.mods) is not None or "_lds_" in mn
            if "load" in mn and not lds: self.wr = R(0); self.rd = allr(1)
            elif "atomic" in mn and re.search(r'\bsc0\b', self.mods): self.wr = R(0); self.rd = allr(0)
            else: self.rd = allr(0)
            if lds: self.rd += [("s", "m0")]
        elif mn.startswith("s_"):
            self.kind = "salu"
            if mn == "s_nop": self.nstates = int(ops[0], 0) + 1
            elif mn.startswith(("s_cmp", "s_waitcnt", "s_barrier", "s_branch", "s_cbranch", "s_endpgm", "s_sleep", "s_setprio")): self.rd = allr(0)
            else: self.wr = R(0); self.rd = allr(1)
        else:
            raise ValueError("unknown instruction: " + text)

class Asm:
    def __init__(self):
        self.ins = []
        self.nlab = 0
    def __call__(self, s):
        for x in s.split("\n"):
            x = x.strip()
            if x and not x.startswith(";"):
                self.ins.append(Ins(x))
    def lab(self, base="L"):
        self.nlab += 1
        return "%s_%d" % (base, self.nlab)
    def finalize(self, verbose=False):
        out = []
        pos = 0
        w_valu = {}; w_trans = {}; w_mfma = {}; r_mfmaC = {}; w_salu_m0 = [-99]; st_data = {}
        mfma_d = {}
        nins = 0
        for I in self.ins:
            if I.kind == "label":
                out.append(I.text); continue
            need = 0
            def req(t, n):
                nonlocal need
                if t is not None: need = max(need, n - (pos - t - 1) - 0)
            if I.kind == "mfma":
                for r in I.rd:
                    if r in w_valu: req(w_valu[r], 2)
                for r in I.rdA:
                    if r in w_mfma: req(w_mfma[r], 8)
                for r in I.rdC:
                    if r in w_mfma:
                        if mfma_d.get(r) != tuple(I.rdC) : req(w_mfma[r], 6)
                for r in I.wr:
                    if r in w_mfma and r not in I.rdC: req(w_mfma[r], 6)
            elif I.kind == "valu":
                for r in I.rd + I.wr:
                    if r in w_mfma: req(w_mfma[r], 8)
                for r in I.wr:
                    if r in r_mfmaC: req(r_mfmaC[r], 3)
                    if r in st_data: req(st_data[r], 2)
                if I.mn.startswith("v_permlane") or "dpp" in I.mn or "row_" in I.mods or "quad_perm" in I.mods:
                    for r in I.rd:
                        if r in w_valu: req(w_valu[r], 2)
                if I.mn.startswith(("v_readfirstlane", "v_readlane")):
                    for r in I.rd:
                        if r in w_valu and r[0] != "s": req(w_valu[r], 1)
                for r in I.rd:
                    if r[0] == "s" and r in w_valu: req(w_valu[r], 2)
                    if r in w_trans and not I.mn.startswith(TRANS): req(w_trans[r], 1)
                    if r in w_trans and I.mn.startswith(TRANS): req(w_trans[r], 1)
            elif I.kind in ("ds", "vmem"):
                for r in I.rd + I.wr:
                    if r in w_mfma: req(w_mfma[r], 8)
                for r in I.rd:
                    if r[0] == "s" and r in w_valu: req(w_valu[r], 5)
                    if r in w_trans: req(w_trans[r], 1)
                if ("s", "m0") in I.rd: req(w_salu_m0[0], 1)
                for r in I.wr:
                    if r in st_data: req(st_data[r], 1)
            elif I.kind == "salu":
                for r in I.rd:
                    if r in w_valu and r[0] == "s": req(w_valu[r], 4)
            if need > 0:
                n = need
                while n > 0:
                    k = min(n, 16)
                    out.append("    s_nop %d" % (k - 1)); pos += k; n -= k; nins += 1
            out.append("    " + I.text); nins += 1
            t = pos
            if I.kind == "mfma":
                for r in I.wr: w_mfma[r] = t; mfma_d[r] = tuple(I.wr); w_valu.pop(r, None); w_trans.pop(r, None)
                for r in I.rdC: r_mfmaC[r] = t
            elif I.kind == "valu":
                for r in I.wr:
                    w_valu[r] = t; w_mfma.pop(r, None); w_trans.pop(r, None)
                    if I.mn.startswith(TRANS): w_trans[r] = t
            else:
                for r in I.wr:
                    w_valu.pop(r, None); w_mfma.pop(r, None); w_trans.pop(r, None)
                    if r == ("s", "m0"): w_salu_m0[0] = t
                if I.kind == "vmem" and re.search(r'(store|atomic).*x[34]', I.mn):
                    for r in regs_of(I.ops[0]): st_data[r] = t
            pos += I.nstates
        self.count = nins
        return "\n".join(out) + "\n"
```

```python
from isa import Ins, TRANS

class St:
    def __init__(self):
        self.pos = 0; self.w_valu = {}; self.w_trans = {}; self.w_mfma = {}; self.r_c = {}
    def need(self, I):
        need = 0
        def req(t, n):
            nonlocal need
            need = max(need, n - (self.pos - t - 1))
        if I.kind == "mfma":
            for r in I.rd:
                if r in self.w_valu: req(self.w_valu[r], 2)
            for r in I.rdA:
                if r in self.w_mfma: req(self.w_mfma[r], 8)
            for r in I.rdC:
                if r in self.w_mfma and r not in I.wr: req(self.w_mfma[r], 6)
        elif I.kind == "valu":
            for r in I.rd + I.wr:
                if r in self.w_mfma: req(self.w_mfma[r], 8)
            for r in I.wr:
                if r in self.r_c: req(self.r_c[r], 3)
            if I.mn.startswith("v_permlane"):
                for r in I.rd:
                    if r in self.w_valu: req(self.w_valu[r], 2)
            for r in I.rd:
                if r in self.w_trans: req(self.w_trans[r], 1)
        return need
    def commit(self, I):
        self.pos += max(0, self.need(I))
        t = self.pos
        if I.kind == "mfma":
            for r in I.wr: self.w_mfma[r] = t; self.w_valu.pop(r, None)
            for r in I.rdC: self.r_c[r] = t
        elif I.kind == "valu":
            for r in I.wr:
                self.w_valu[r] = t; self.w_mfma.pop(r, None); self.w_trans.pop(r, None)
                if I.mn.startswith(TRANS): self.w_trans[r] = t
        self.pos += I.nstates

def interleave(streams, weights=None):
    S = [[Ins(x) for x in s] for s in streams]
    idx = [0] * len(S)
    st = St()
    out = []
    weights = weights or [1] * len(S)
    order = [i for i, w in enumerate(weights) for _ in range(w)]
    tot = sum(weights)
    order = sorted(range(tot), key=lambda k: 0)
    seq = []
    acc = [0.0] * len(S)
    for _ in range(tot):
        for i in range(len(S)): acc[i] += weights[i] / tot
        b = max(range(len(S)), key=lambda i: acc[i]); acc[b] -= 1; seq.append(b)
    p = 0
    while any(idx[i] < len(S[i]) for i in range(len(S))):
        best = None
        for k in range(tot):
            i = seq[(p + k) % tot]
            if idx[i] >= len(S[i]): continue
            n = st.need(S[i][idx[i]])
            if best is None or n < best[0]: best = (n, i, k)
            if n <= 0: break
        n, i, k = best
        I = S[i][idx[i]]; idx[i] += 1
        st.commit(I); out.append(I.text)
        p = (p + k + 1) % tot
    return out
```

```python
import sys
from isa import Asm, Ins
import sched

KN = "concat_heads__linear_attn_block__sliding_local_dilated__prompt_kernel"
OPT = dict(stamps=0, rot=1, stop=99, prio=0, sleep=2)
for x in sys.argv[2:]:
    k, v = x.split("="); OPT[k] = int(v)
STAMPS = OPT["stamps"]
ATOM = " sc1" if OPT.get("atomsc1", 1) else ""

WS_FLAG = 0x0
WS_KV = 0x4000
WS_Z = 0xC000
WS_OP = 0x100000
WS_STAMP = 128 << 20
WS_BYTES = 268435456
SLOT = 43008
WOFF = 18432
WO_BASE = 32768
LDS_K = 0
LDS_Z = 16384
LDS_BYTES = 163840
BIG = 0xf149f2ca
EPS = 0x358637bd
LOG2E = 0x3fb8aa3b
NEG_EPS_LOG2E = 0xb5c1a4b9
import struct
def f2u(f): return struct.unpack("<I", struct.pack("<f", f))[0]
import math
LOG2E = f2u(math.log2(math.e)); EPS = f2u(1e-6); BIG = f2u(-1e30)
NEG_EPS_LOG2E = f2u(-1e-6 * math.log2(math.e))
SCALE_C = f2u(0.25 * math.log2(math.e))

sX, sW, sWO, sOUT, sWS, sDBG = 20, 24, 28, 32, 36, 40
sBR, sRT, sHG, sWAVE, sRB, sCT, sLW, sROT = 44, 45, 46, 47, 48, 49, 50, 51
sT0, sT1, sT2, sT3, sT4, sT5 = 52, 53, 54, 55, 56, 57
sX0, sX1, sH, sW0, sW1, sW2, sKC = 58, 59, 60, 61, 62, 63, 64
sM, sCNT, sSAVE = 65, 66, 68
sC0, sC1, sC2, sC3 = 70, 71, 72, 73
sSTB = 76
NSTAMP = 12

a = Asm()

def stamp(i):
    if STAMPS:
        a("s_memrealtime s[%d:%d]" % (sSTB + 2 * i, sSTB + 2 * i + 1))

def stamp_wait():
    if STAMPS:
        a("s_waitcnt lgkmcnt(0)")

def srd(d, base, nbytes):
    a("s_mov_b32 s%d, s%d\ns_and_b32 s%d, s%d, 0xffff\ns_mov_b32 s%d, 0x%x\ns_mov_b32 s%d, 0x00020000" % (d, base, d + 1, base + 1, d + 2, nbytes, d + 3))

def vr(b, n=1):
    return "v%d" % b if n == 1 else "v[%d:%d]" % (b, b + n - 1)
def ar(b, n=1):
    return "a%d" % b if n == 1 else "a[%d:%d]" % (b, b + n - 1)

a("s_cmp_ge_u32 s2, 256\ns_cbranch_scc1 L_end")
if STAMPS:
    for i in range(2 * NSTAMP): a("s_mov_b32 s%d, 0" % (sSTB + i))
stamp(0)
a("s_and_b32 s%d, s2, 7" % sT0)
a("s_lshr_b32 s%d, s2, 3" % sT1)
a("s_lshr_b32 s%d, s%d, 2" % (sBR, sT0))
a("s_mul_i32 s%d, s%d, 24" % (sT2, sBR))
a("s_add_u32 s18, s0, s%d\ns_addc_u32 s19, s1, 0" % sT2)
a("s_load_dwordx4 s[4:7], s[18:19], 0")
a("s_load_dwordx2 s[8:9], s[18:19], 16")
a("s_load_dwordx4 s[12:15], s[0:1], 48")
a("s_load_dwordx2 s[16:17], s[0:1], 64")
a("v_lshrrev_b32 v1, 6, v0\nv_and_b32 v0, 63, v0")
a("s_and_b32 s%d, s%d, 1\ns_lshl_b32 s%d, s%d, 3\ns_and_b32 s%d, s%d, 7\ns_add_u32 s%d, s%d, s%d" % (sT2, sT0, sT2, sT2, sT3, sT1, sRT, sT2, sT3))
a("v_readfirstlane_b32 s%d, v1" % sWAVE)
a("s_lshr_b32 s%d, s%d, 1\ns_and_b32 s%d, s%d, 1\ns_lshl_b32 s%d, s%d, 2\ns_lshr_b32 s%d, s%d, 3\ns_add_u32 s%d, s%d, s%d" % (sT2, sT0, sT2, sT2, sT2, sT2, sT4, sT1, sHG, sT2, sT4))
a("s_and_b32 s%d, s%d, 3\ns_lshl_b32 s%d, s%d, 3\ns_lshr_b32 s%d, s%d, 2\ns_add_u32 s%d, s%d, s%d" % (sT2, sT0, sT2, sT2, sT5, sT1, sRB, sT2, sT5))
a("s_and_b32 s%d, s%d, 3" % (sCT, sT1))
if OPT["rot"] == 1:
    a("s_lshl_b32 s%d, s%d, 1\ns_add_u32 s%d, s%d, s%d\ns_and_b32 s%d, s%d, 7" % (sROT, sT4, sROT, sROT, sT3, sROT, sROT))
elif OPT["rot"] == 2:
    a("s_and_b32 s%d, s%d, 1\ns_lshl_b32 s%d, s%d, 2" % (sROT, sT3, sROT, sROT))
else:
    a("s_mov_b32 s%d, 0" % sROT)
a("s_and_b32 s%d, s%d, 3" % (sLW, sWAVE))
a("s_waitcnt lgkmcnt(0)")
stamp(1)
srd(sX, 4, 2048 * 1024)
srd(sW, 6, 512 * 3072)
srd(sWO, 8, 512 * 1024)
srd(sOUT, 12, 2048 * 2048)
srd(sDBG, 14, 256)
srd(sWS, 16, WS_BYTES)
a("s_cmp_ge_u32 s%d, 4\ns_cbranch_scc1 L_loader" % sWAVE)

vQ, vK, vKH, vV, vVH = 8, 40, 72, 76, 108
vXR = 112
vWR = 118
vB = 121
vBC, vBP, vBH0, vBH1, vMC = 122, 126, 130, 134, 138
vTMP = 140
aXF, aWF = 0, 36

a("v_and_b32 v1, 15, v0\nv_lshrrev_b32 v2, 4, v0")
a("v_lshrrev_b32 v3, 1, v1")
a("v_xor_b32 v4, v3, v2")
a("v_lshlrev_b32 v5, 7, v1\nv_lshl_add_u32 v5, v4, 4, v5")
for s_ in range(3):
    a("v_add_u32 v%d, %d, v5" % (vXR + 2 * s_, s_ * SLOT))
    a("v_xor_b32 v%d, 64, v%d" % (vXR + 2 * s_ + 1, vXR + 2 * s_))
a("v_bfe_u32 v3, v0, 2, 2\nv_and_b32 v4, 3, v0")
a("v_lshl_add_u32 v5, v2, 3, v3\nv_lshlrev_b32 v5, 7, v5")
a("v_lshrrev_b32 v6, 1, v3\nv_and_b32 v7, 1, v2\nv_lshl_or_b32 v6, v7, 1, v6")
a("v_xor_b32 v6, s%d, v6" % sWAVE)
a("v_lshl_add_u32 v5, v6, 5, v5\nv_lshl_add_u32 v5, v4, 3, v5")
for s_ in range(3):
    a("v_add_u32 v%d, %d, v5" % (vWR + s_, s_ * SLOT + WOFF))
a("s_cmp_eq_u32 s%d, 0\ns_cbranch_scc0 L_mainB" % sBR)

def main_loop(br):
    NT = 9 if br else 8
    lg = []
    def rd_x(step, t):
        c, st = step >> 1, step & 1
        s_ = c % 3
        a("ds_read_b128 %s, v%d offset:%d" % (ar(aXF + 4 * t, 4), vXR + 2 * s_ + st, t * 2048)); lg.append(("x", step, t))
    def rd_w(step, i):
        c, st = step >> 1, step & 1
        s_ = c % 3
        part, rd = i >> 1, i & 1
        a("ds_read_b64_tr_b16 %s, v%d offset:%d" % (ar(aWF + 12 * (step & 1) + 4 * part + 2 * rd, 2), vWR + s_, part * 8192 + st * 4096 + rd * 512)); lg.append(("w", step, i))
    def need(keys):
        last = -1
        for i, k in enumerate(lg):
            if k in keys: last = i
        if last >= 0:
            n = len(lg) - 1 - last
            a("s_waitcnt lgkmcnt(%d)" % min(n, 15))
            if n > 15: n = 15
            del lg[:len(lg) - n]
    a("s_barrier")
    stamp(2)
    for i in range(6): rd_w(0, i)
    for t in range(NT): rd_x(0, t)
    for step in range(16):
        st = step & 1
        last = step == 15
        pend = []
        if not last:
            pend = [("w", i) for i in range(6)]
        deferred = []
        for t in range(NT):
            keys = [("x", step, t)]
            if t == 0: keys += [("w", step, i) for i in range(6)]
            need(keys)
            wb = aWF + 12 * (step & 1)
            xf = ar(aXF + 4 * t, 4)
            def cop(acc, eps):
                if step == 0: return vr(vTMP, 4) if eps else "0"
                return vr(acc, 4)
            if t < 8:
                a("v_mfma_f32_16x16x32_bf16 %s, %s, %s, %s" % (vr(vQ + 4 * t, 4), ar(wb, 4), xf, cop(vQ + 4 * t, br == 0)))
                kacc, vacc = vK + 4 * t, vV + 4 * t
            else:
                kacc, vacc = vKH, vVH
            if br:
                a("v_mfma_f32_16x16x32_bf16 %s, %s, %s, %s" % (vr(kacc, 4), ar(wb + 4, 4), xf, cop(kacc, False)))
            else:
                a("v_mfma_f32_16x16x32_bf16 %s, %s, %s, %s" % (vr(kacc, 4), xf, ar(wb + 4, 4), cop(kacc, True)))
            a("v_mfma_f32_16x16x32_bf16 %s, %s, %s, %s" % (vr(vacc, 4), xf, ar(wb + 8, 4), cop(vacc, False)))
            if st == 1 and t <= 2:
                if not last: deferred.append(("x", t))
                if t == 2:
                    a("s_waitcnt lgkmcnt(0)"); del lg[:]
                    a("s_barrier")
                    pend = pend + deferred if not last else []
                    if not last:
                        k = 0
                        while k < 3 and pend:
                            kind, i = pend.pop(0); rd_w(step + 1, i) if kind == "w" else rd_x(step + 1, i); k += 1
                continue
            if last: continue
            npend = 2
            if st == 1:
                pend.append(("x", t))
                k = 0
                while k < 3 and pend:
                    kind, i = pend.pop(0); rd_w(step + 1, i) if kind == "w" else rd_x(step + 1, i); k += 1
            else:
                rd_x(step + 1, t)
                k = 0
                while k < npend and pend:
                    kind, i = pend.pop(0); rd_w(step + 1, i); k += 1
        while pend:
            kind, i = pend.pop(0); rd_w(step + 1, i) if kind == "w" else rd_x(step + 1, i)
    stamp(3)

def store_op(base0, npairs, first_pair=0):
    pass

def op_store_addr(vd):
    a("v_and_b32 v3, 1, v2\nv_lshlrev_b32 v3, 14, v3")
    a("v_lshrrev_b32 v4, 1, v2\nv_lshl_add_u32 v3, v4, 9, v3\nv_lshl_add_u32 v3, v1, 4, v3")
    a("s_lshl_b32 s%d, s%d, 17" % (sT0, sRT))
    a("s_lshl_b32 s%d, s%d, 11\ns_add_u32 s%d, s%d, s%d" % (sT1, sHG, sT0, sT0, sT1))
    a("s_lshr_b32 s%d, s%d, 1\ns_lshl_b32 s%d, s%d, 10\ns_add_u32 s%d, s%d, s%d" % (sT1, sWAVE, sT1, sT1, sT0, sT0, sT1))
    a("s_and_b32 s%d, s%d, 1\ns_lshl_b32 s%d, s%d, 8\ns_add_u32 s%d, s%d, s%d" % (sT1, sWAVE, sT1, sT1, sT0, sT0, sT1))
    a("s_lshl_b32 s%d, s%d, 21\ns_add_u32 s%d, s%d, s%d\ns_add_u32 s%d, s%d, 0x%x" % (sT1, sBR, sT0, sT0, sT1, sT0, sT0, WS_OP))
    a("v_add_u32 v%d, s%d, v3" % (vd, sT0))

vOPA = 7
vKVA = 6

a("L_mainA:")
a("v_mov_b32 v%d, 0x%x" % (vTMP, EPS))
for i in range(1, 4): a("v_mov_b32 v%d, v%d" % (vTMP + i, vTMP))
op_store_addr(vOPA)
a("s_lshl_b32 s%d, s%d, 2\ns_add_u32 s%d, s%d, s%d" % (sT0, sHG, sT0, sT0, sWAVE))
a("s_lshl_b32 s%d, s%d, 10\ns_add_u32 s%d, s%d, 0x%x" % (sT1, sT0, sT1, sT1, WS_KV))
a("v_lshl_add_u32 v%d, v0, 2, s%d" % (vKVA, sT1))
a("s_lshl_b32 s%d, s%d, 6\ns_add_u32 s%d, s%d, 0x%x" % (sT1, sT0, sT1, sT1, WS_Z))
a("v_lshl_add_u32 v5, v0, 2, s%d" % sT1)
a("s_mov_b32 s%d, 0x%x\ns_mov_b32 s%d, 0x%x\ns_mov_b32 s%d, 0x%x" % (sC0, LOG2E, sC1, NEG_EPS_LOG2E, sC2, EPS))
main_loop(0)

def phi_stream(r0, dst, t0, t1):
    s = []
    for i in range(4):
        s.append("v_fma_f32 v%d, v%d, s%d, v%d" % (t0 + i, r0 + i, sC0, 4))
    for i in range(4):
        s.append("v_exp_f32_e64 v%d, v%d clamp" % (t0 + i, t0 + i))
    for i in range(4):
        s.append("v_max_f32 v%d, s%d, v%d" % (r0 + i, sC2, r0 + i))
    for i in range(4):
        s.append("v_add_f32 v%d, v%d, v%d" % (r0 + i, r0 + i, t0 + i))
    s.append("v_cvt_pk_bf16_f32 v%d, v%d, v%d" % (dst, r0, r0 + 1))
    s.append("v_cvt_pk_bf16_f32 v%d, v%d, v%d" % (dst + 1, r0 + 2, r0 + 3))
    return s

a("v_mov_b32 v4, s%d" % sC1)
vKP, vVP, vQP = 112, 128, 144
ONES = 72
for i in range(4): a("v_mov_b32 v%d, 0x3f803f80" % (ONES + i))
TQ = [108, 72 + 0]
streams = []
tq = [160 - 0]
for t in range(0, 8, 2):
    s0 = phi_stream(vK + 4 * t, vKP + 2 * t, 108, None)
    s1 = phi_stream(vK + 4 * (t + 1), vKP + 2 * (t + 1), 144, None)
    sv = ["v_cvt_pk_bf16_f32 v%d, v%d, v%d" % (vVP + 2 * tt + i, vV + 4 * tt + 2 * i, vV + 4 * tt + 2 * i + 1) for tt in (t, t + 1) for i in range(2)]
    for x in sched.interleave([s0, s1, sv]): a(x)
    acc_kv, acc_z = 76, 80
    cop = lambda r: "0" if t == 0 else vr(r, 4)
    a("v_mfma_f32_16x16x32_bf16 %s, %s, %s, %s" % (vr(acc_kv, 4), vr(vKP + 2 * t, 4), vr(vVP + 2 * t, 4), cop(acc_kv)))
    a("v_mfma_f32_16x16x32_bf16 %s, %s, %s, %s" % (vr(acc_z, 4), vr(ONES, 4), vr(vKP + 2 * t, 4), cop(acc_z)))
stamp(4)
for r in range(4):
    a("buffer_atomic_add_f32 v%d, v%d, s[%d:%d], 0 offen offset:%d%s" % (76 + r, vKVA, sWS, sWS + 3, r * 256, ATOM))
a("s_mov_b64 s[%d:%d], exec\ns_mov_b64 exec, 0xffff" % (sSAVE, sSAVE + 1))
a("buffer_atomic_add_f32 v80, v5, s[%d:%d], 0 offen%s" % (sWS, sWS + 3, ATOM))
a("s_mov_b64 exec, s[%d:%d]" % (sSAVE, sSAVE + 1))
for t in range(0, 8, 2):
    s0 = phi_stream(vQ + 4 * t, vQP + 2 * t, 108, None)
    s1 = phi_stream(vQ + 4 * (t + 1), vQP + 2 * (t + 1), 84, None)
    for x in sched.interleave([s0, s1]): a(x)
    b = vQP + 2 * t
    a("v_permlane16_swap_b32 v%d, v%d\nv_permlane16_swap_b32 v%d, v%d" % (b, b + 2, b + 1, b + 3))
    a("s_mov_b32 s%d, %d" % (sT0, t * 16384))
    a("buffer_store_dwordx4 %s, v%d, s[%d:%d], s%d offen sc1" % (vr(b, 4), vOPA, sWS, sWS + 3, sT0))
stamp(5)
a("s_waitcnt vmcnt(0)")
a("s_barrier")
a("s_branch L_p2wait")

a("L_mainB:")
op_store_addr(vOPA)
a("v_lshlrev_b32 v3, 2, v2")
a("v_mov_b32 v6, 0x%x" % BIG)
for r in range(4):
    a("v_add_u32 v4, %d, v3" % r)
    a("v_sub_u32 v5, v1, v4")
    a("v_cmp_gt_u32 vcc, 8, v5")
    a("v_cndmask_b32_e64 v%d, v6, 0, vcc" % (vBC + r))
    if r % 2 == 0:
        a("v_cndmask_b32_e64 v%d, 0, -1, vcc\nv_and_b32 v%d, 0xffff, v%d" % (vMC + r // 2, vMC + r // 2, vMC + r // 2))
    else:
        a("v_cndmask_b32_e64 v5, 0, -1, vcc\nv_and_b32 v5, 0xffff0000, v5\nv_or_b32 v%d, v%d, v5" % (vMC + r // 2, vMC + r // 2))
    a("v_sub_u32 v5, v4, v1")
    a("v_cmp_le_i32 vcc, 9, v5")
    a("v_cndmask_b32_e64 v%d, v6, 0, vcc" % (vBP + r))
    a("v_cmp_le_i32 vcc, 1, v5\nv_cndmask_b32_e64 v%d, v6, 0, vcc" % (vBH0 + r))
    a("v_cmp_ge_u32 vcc, 7, v4\nv_cndmask_b32_e64 v%d, v6, v%d, vcc" % (vBH0 + r, vBH0 + r))
    a("v_mov_b32 v%d, v%d" % (vBH1 + r, vBP + r))
a("s_cmp_eq_u32 s%d, 0\ns_cbranch_scc0 L_nomask" % sRT)
for r in range(4):
    a("v_mov_b32 v%d, v6\nv_mov_b32 v%d, v6" % (vBH0 + r, vBH1 + r))
a("L_nomask:")
a("s_mov_b32 s%d, 0x%x" % (sC0, SCALE_C))
main_loop(1)
vVP = 140; vKPb = 76; vQPb = 94
def VP(p, u): return vVP + 10 * p + 2 * (u + 1)
def KP(t): return vKPb + 2 * t
def QP(t): return vQPb + 2 * t
pk = lambda d, s: ["v_cvt_pk_bf16_f32 v%d, v%d, v%d" % (d, s, s + 1), "v_cvt_pk_bf16_f32 v%d, v%d, v%d" % (d + 1, s + 2, s + 3)]
for t in range(8):
    for x in pk(VP(t & 1, t >> 1), vV + 4 * t): a(x)
for x in pk(VP(0, -1), vVH): a(x)
a("v_mov_b32 v%d, v%d\nv_mov_b32 v%d, v%d" % (VP(1, -1), VP(0, -1), VP(1, -1) + 1, VP(0, -1) + 1))
for t in range(8):
    for x in pk(KP(t), vK + 4 * t): a(x)
for x in pk(KP(8), vKH): a(x)
for t in range(8):
    for x in pk(QP(t), vQ + 4 * t): a(x)
ONESB = 110
ONESB = 112
for i in range(4): a("v_mov_b32 v%d, 0x3f803f80" % (ONESB + i))
def unit(t, T):
    p, u = t & 1, t >> 1
    SP, SC, SM, m0, m1 = T, T + 4, T + 8, T + 12, T + 13
    tp = 8 if u == 0 else t - 2
    bias = (vBH0 if p == 0 else vBH1) if u == 0 else vBP
    s = []
    s.append("v_mfma_f32_16x16x16_bf16 %s, %s, %s, %s" % (vr(SP, 4), vr(KP(tp), 2), vr(QP(t), 2), vr(bias, 4)))
    s.append("v_mfma_f32_16x16x16_bf16 %s, %s, %s, %s" % (vr(SC, 4), vr(KP(t), 2), vr(QP(t), 2), vr(vBC, 4)))
    for r in range(4): s.append("v_max_f32 v%d, v%d, v%d" % (SC + r, SC + r, SP + r))
    s.append("v_max3_f32 v%d, v%d, v%d, v%d" % (m0, SC, SC + 1, SC + 2))
    s.append("v_max_f32 v%d, v%d, v%d" % (m0, m0, SC + 3))
    s.append("v_mov_b32 v%d, v%d" % (m1, m0))
    s.append("v_permlane16_swap_b32 v%d, v%d" % (m0, m1))
    s.append("v_max_f32 v%d, v%d, v%d" % (m0, m0, m1))
    s.append("v_mov_b32 v%d, v%d" % (m1, m0))
    s.append("v_permlane32_swap_b32 v%d, v%d" % (m0, m1))
    s.append("v_max_f32 v%d, v%d, v%d" % (m0, m0, m1))
    s.append("v_mul_f32 v%d, s%d, v%d" % (m0, sC0, m0))
    for r in range(4): s.append("v_fma_f32 v%d, v%d, s%d, -v%d" % (SC + r, SC + r, sC0, m0))
    for r in range(4): s.append("v_exp_f32 v%d, v%d" % (SC + r, SC + r))
    s.append("v_cvt_pk_bf16_f32 v%d, v%d, v%d" % (SC, SC, SC + 1))
    s.append("v_cvt_pk_bf16_f32 v%d, v%d, v%d" % (SC + 1, SC + 2, SC + 3))
    s.append("v_and_b32 v%d, v%d, v%d" % (SP + 2, SC, vMC))
    s.append("v_and_b32 v%d, v%d, v%d" % (SP + 3, SC + 1, vMC + 1))
    s.append("v_xor_b32 v%d, v%d, v%d" % (SP, SC, SP + 2))
    s.append("v_xor_b32 v%d, v%d, v%d" % (SP + 1, SC + 1, SP + 3))
    s.append("v_mfma_f32_16x16x32_bf16 %s, %s, %s, 0" % (vr(SM, 4), vr(ONESB, 4), vr(SP, 4)))
    s.append("v_mfma_f32_16x16x32_bf16 %s, %s, %s, 0" % (vr(SC, 4), vr(VP(p, u - 1), 4), vr(SP, 4)))
    s.append("v_rcp_f32 v%d, v%d" % (m0, SM))
    for r in range(4): s.append("v_mul_f32 v%d, v%d, v%d" % (SC + r, SC + r, m0))
    s.append("v_cvt_pk_bf16_f32 v%d, v%d, v%d" % (QP(t), SC, SC + 1))
    s.append("v_cvt_pk_bf16_f32 v%d, v%d, v%d" % (QP(t) + 1, SC + 2, SC + 3))
    return s
for grp in range(2):
    ss = [unit(4 * grp + i, 8 + 16 * i) for i in range(4)]
    for x in sched.interleave(ss): a(x)
    for u in (2 * grp, 2 * grp + 1):
        b = QP(2 * u)
        a("v_permlane16_swap_b32 v%d, v%d\nv_permlane16_swap_b32 v%d, v%d" % (b, b + 2, b + 1, b + 3))
        a("s_mov_b32 s%d, %d" % (sT0, 2 * u * 16384))
        a("buffer_store_dwordx4 %s, v%d, s[%d:%d], s%d offen sc1" % (vr(b, 4), vOPA, sWS, sWS + 3, sT0))
stamp(5)
a("s_waitcnt vmcnt(0)")
a("s_barrier")
a("s_branch L_p2wait")

a("L_loader:")
a("v_lshrrev_b32 v1, 3, v0\nv_and_b32 v2, 7, v0")
vXS, vHS, vWS_, vWOS = 8, 10, 12, 14
a("v_lshrrev_b32 v3, 1, v1")
for mh in range(2):
    a("v_or_b32 v4, %d, v3\nv_xor_b32 v4, v4, v2\nv_lshlrev_b32 v4, 4, v4" % (4 * mh))
    a("v_lshl_add_u32 v4, v1, 11, v4\nv_add_u32 v%d, %d, v4" % (vXS + mh, mh * 16 * 1024))
a("s_lshl_b32 s%d, s%d, 2\nv_add_u32 v4, s%d, v1" % (sT0, sLW, sT0))
a("v_and_b32 v5, 7, v4\nv_lshlrev_b32 v5, 1, v5\nv_lshrrev_b32 v6, 3, v4\nv_add_u32 v5, v5, v6")
a("s_lshl_b32 s%d, s%d, 7\ns_sub_u32 s%d, s%d, 16\nv_add_u32 v5, s%d, v5\nv_max_i32 v5, 0, v5" % (sT0, sRT, sT0, sT0, sT0))
a("v_lshrrev_b32 v6, 1, v4\nv_and_b32 v6, 7, v6\nv_xor_b32 v6, v6, v2\nv_lshlrev_b32 v6, 4, v6\nv_lshl_add_u32 v%d, v5, 10, v6" % vHS)
a("v_and_b32 v4, 1, v3\nv_lshrrev_b32 v5, 1, v2\nv_and_b32 v6, 1, v2")
a("v_mul_u32_u24 v7, 3072, v1")
for kp in range(2):
    a("v_or_b32 v16, %d, v4\nv_xor_b32 v16, v16, v5\nv_lshlrev_b32 v16, 5, v16\nv_lshl_add_u32 v16, v6, 4, v16" % (2 * kp))
    a("v_add_u32 v16, v16, v7\nv_add_u32 v%d, %d, v16" % (vWS_ + kp, kp * 8 * 3072))
a("v_lshrrev_b32 v3, 4, v0\nv_bfe_u32 v4, v0, 1, 3\nv_and_b32 v5, 1, v0")
a("s_lshl_b32 s%d, s%d, 8" % (sT0, sCT))
a("s_and_b32 s%d, s%d, 1" % (sT1, sLW))
for b in range(2):
    a("s_cmp_eq_u32 s%d, 0\ns_cselect_b32 s%d, s%d, %d\ns_lshl_b32 s%d, s%d, 2" % (sBR, sT2, sT1, b, sT2, sT2))
    a("v_or_b32 v6, s%d, v3\nv_xor_b32 v6, v6, v4\nv_lshlrev_b32 v6, 5, v6\nv_lshl_add_u32 v6, v5, 4, v6" % sT2)
    a("v_lshl_add_u32 v6, v3, 10, v6\nv_add_u32 v%d, s%d, v6" % (vWOS + b, sT0))

a("v_and_b32 v25, 7, v0\nv_lshlrev_b32 v25, 2, v25\nv_mov_b32 v24, 0")
def dma(vaddr, srd_, soff, ldsreg_or_imm):
    a("s_mov_b32 m0, %s" % ldsreg_or_imm)
    a("buffer_load_dwordx4 v%d, s[%d:%d], s%d offen lds" % (vaddr, srd_, srd_ + 3, soff))

def loader(br):
    n = 11 if br else 10
    sLX, sLH, sLWb = 74, 75, 67
    a("s_lshl_b32 s%d, s%d, 12" % (sLX, sLW))
    a("s_lshl_b32 s%d, s%d, 9\ns_add_u32 s%d, s%d, 16384" % (sLH, sLW, sLH, sLH))
    a("s_lshl_b32 s%d, s%d, 11\ns_add_u32 s%d, s%d, %d" % (sLWb, sLW, sLWb, sLWb, WOFF))
    a("s_lshl_b32 s%d, s%d, 17\ns_lshl_b32 s%d, s%d, 15\ns_add_u32 s18, s%d, s%d" % (sT0, sRT, sT1, sLW, sT0, sT1))
    a("s_mul_i32 s%d, s%d, %d\ns_lshl_b32 s%d, s%d, 7\ns_add_u32 s19, s%d, s%d" % (sT0, sLW, 16 * 3072, sT1, sHG, sT0, sT1))
    def chunk(c):
        sl = (c % 3) * SLOT
        a("s_add_u32 s%d, s%d, %d\ns_and_b32 s%d, s%d, 7" % (sKC, sROT, c, sKC, sKC))
        a("s_lshl_b32 s%d, s%d, 7" % (sH, sKC))
        a("s_add_u32 s%d, s18, s%d\ns_add_u32 s%d, s%d, 1024" % (sX0, sH, sX1, sX0))
        a("s_mul_i32 s%d, s%d, %d\ns_add_u32 s%d, s19, s%d" % (sW0, sKC, 64 * 3072, sW0, sW0))
        a("s_add_u32 s%d, s%d, 1024\ns_add_u32 s%d, s%d, 2048" % (sW1, sW0, sW2, sW0))
        for part, sw in enumerate((sW0, sW1, sW2)):
            for kp in range(2):
                a("s_add_u32 m0, s%d, %d" % (sLWb, sl + part * 8192 + kp * 1024))
                a("buffer_load_dwordx4 v%d, s[%d:%d], s%d offen lds" % (vWS_ + kp, sW, sW + 3, sw))
        for pp, sx in enumerate((sX0, sX1)):
            for mh in range(2):
                a("s_add_u32 m0, s%d, %d" % (sLX, sl + pp * 2048 + mh * 1024))
                a("buffer_load_dwordx4 v%d, s[%d:%d], s%d offen lds" % (vXS + mh, sX, sX + 3, sx))
        if br:
            a("s_add_u32 m0, s%d, %d" % (sLH, sl))
            a("s_mov_b32 exec_hi, 0")
            a("buffer_load_dwordx4 v%d, s[%d:%d], s%d offen lds" % (vHS, sX, sX + 3, sH))
            a("s_mov_b32 exec_hi, -1")
    def wo(n0, n1):
        for nn in range(n0, n1):
            a("s_lshl_b32 s%d, s%d, 12\ns_add_u32 s%d, s%d, %d" % (sT0, sLW, sT0, sT0, nn * 16384))
            a("s_lshl_b32 s%d, s%d, 10\ns_add_u32 m0, s%d, %d" % (sT1, sLW, sT1, WO_BASE + nn * 4096))
            a("buffer_load_dwordx4 v%d, s[%d:%d], s%d offen lds" % (vWOS + (nn & 1), sWO, sWO + 3, sT0))
    if br == 0:
        a("s_cmp_eq_u32 s%d, 0\ns_cbranch_scc0 L_noinit" % sRT)
        a("s_lshl_b32 s%d, s%d, 2\ns_add_u32 s%d, s%d, s%d" % (sT0, sHG, sT0, sT0, sLW))
        a("s_lshl_b32 s%d, s%d, 10\ns_add_u32 s%d, s%d, 0x%x" % (sT1, sT0, sT1, sT1, WS_KV))
        a("v_lshl_add_u32 v16, v0, 4, s%d" % sT1)
        a("v_mov_b32 v20, 0\nv_mov_b32 v21, 0\nv_mov_b32 v22, 0\nv_mov_b32 v23, 0")
        a("buffer_store_dwordx4 v[20:23], v16, s[%d:%d], 0 offen sc1" % (sWS, sWS + 3))
        a("s_lshl_b32 s%d, s%d, 6\ns_add_u32 s%d, s%d, 0x%x" % (sT1, sT0, sT1, sT1, WS_Z))
        a("s_lshl_b32 s%d, s%d, 8\ns_add_u32 s%d, s%d, %d\ns_sub_u32 s%d, s%d, 64" % (sT2, sT0, sT2, sT2, WS_FLAG, sT2, sT2))
        a("v_lshl_add_u32 v17, v0, 4, s%d\nv_lshl_add_u32 v18, v0, 4, s%d" % (sT1, sT2))
        a("v_cmp_gt_u32 vcc, 4, v0\nv_cndmask_b32 v17, v18, v17, vcc")
        a("s_mov_b64 s[%d:%d], exec\ns_mov_b64 exec, 0xfffff" % (sSAVE, sSAVE + 1))
        a("buffer_store_dwordx4 v[20:23], v17, s[%d:%d], 0 offen sc1" % (sWS, sWS + 3))
        a("s_mov_b64 exec, s[%d:%d]" % (sSAVE, sSAVE + 1))
        a("L_noinit:")
    chunk(0); chunk(1); chunk(2)
    for c in range(8):
        if c == 0: w = 2 * n
        elif c <= 5: w = n
        elif c == 6: w = n + 8
        else: w = 19
        a("s_waitcnt vmcnt(%d)" % w)
        if c == 7:
            lab = a.lab("L_ini")
            a("s_cmp_eq_u32 s%d, 0\ns_cbranch_scc0 %s_x" % (sLW, lab))
            a("s_mov_b32 s%d, 0" % sCNT)
            a("%s:" % lab)
            a("v_cmp_eq_u32 vcc, 1, v24\ns_cmp_eq_u64 vcc, -1\ns_cbranch_scc1 %s_x" % lab)
            a("s_add_u32 s%d, s%d, 1\ns_cmp_gt_u32 s%d, 100000\ns_cbranch_scc1 %s_x" % (sCNT, sCNT, sCNT, lab))
            a("buffer_load_dword v24, v25, s[%d:%d], 0 offen sc1\ns_waitcnt vmcnt(0)\ns_branch %s" % (sDBG, sDBG + 3, lab))
            a("%s_x:" % lab)
        a("s_barrier")
        if c == 0 and br == 0:
            lab = a.lab("L_ifl")
            a("s_cmp_eq_u32 s%d, 0\ns_cbranch_scc0 %s\ns_cmp_eq_u32 s%d, 0\ns_cbranch_scc0 %s" % (sRT, lab, sLW, lab))
            a("s_lshl_b32 s%d, s%d, 2\nv_mov_b32 v16, s%d\nv_mov_b32 v17, 1" % (sT0, sHG, sT0))
            a("s_mov_b64 s[%d:%d], exec\ns_mov_b64 exec, 1" % (sSAVE, sSAVE + 1))
            a("buffer_store_dword v17, v16, s[%d:%d], 0 offen sc1" % (sDBG, sDBG + 3))
            a("s_mov_b64 exec, s[%d:%d]" % (sSAVE, sSAVE + 1))
            a("%s:" % lab)
        if 1 <= c <= 5: chunk(c + 2)
        if c == 5:
            lab = a.lab("L_dbg")
            a("s_cmp_eq_u32 s%d, 0\ns_cbranch_scc0 %s" % (sLW, lab))
            a("buffer_load_dword v24, v25, s[%d:%d], 0 offen sc1" % (sDBG, sDBG + 3))
            a("%s:" % lab)
            wo(24, 32)
        if c == 6: wo(13, 24)
        if c == 7: wo(0, 2)
    a("s_barrier")
    wo(2, 13)
    a("s_waitcnt vmcnt(0)")
    a("s_barrier")
    lab = a.lab("L_fl")
    a("s_cmp_eq_u32 s%d, 0\ns_cbranch_scc0 L_p2wait" % sLW)
    a("s_lshl_b32 s%d, s%d, 8\ns_lshl_b32 s%d, s%d, 2\ns_add_u32 s%d, s%d, s%d\ns_add_u32 s%d, s%d, %d" % (sT0, sRT, sT1, sHG, sT0, sT0, sT1, sT0, sT0, WS_FLAG + br * 4096))
    a("v_mov_b32 v16, s%d\nv_mov_b32 v17, 1" % sT0)
    a("s_mov_b64 s[%d:%d], exec\ns_mov_b64 exec, 1" % (sSAVE, sSAVE + 1))
    a("buffer_store_dword v17, v16, s[%d:%d], 0 offen sc1" % (sWS, sWS + 3))
    a("s_mov_b64 exec, s[%d:%d]" % (sSAVE, sSAVE + 1))
    a("s_waitcnt vmcnt(0)")
    stamp(6)
    a("s_mov_b32 s%d, 0" % sCNT)
    if br:
        a("s_lshr_b32 s%d, s%d, 1\ns_lshl_b32 s%d, s%d, 8\ns_add_u32 s%d, s%d, %d" % (sT0, sRB, sT0, sT0, sT0, sT0, WS_FLAG + 4096))
        a("v_and_b32 v16, 7, v0\nv_lshl_add_u32 v16, v16, 2, s%d" % sT0)
        a("%s:" % lab)
        a("buffer_load_dword v17, v16, s[%d:%d], 0 offen sc1\ns_waitcnt vmcnt(0)" % (sWS, sWS + 3))
        a("v_cmp_eq_u32 vcc, 1, v17")
    else:
        a("v_lshrrev_b32 v16, 3, v0\nv_lshlrev_b32 v16, 8, v16\nv_and_b32 v17, 7, v0\nv_lshl_add_u32 v16, v17, 2, v16")
        if WS_FLAG: a("v_add_u32 v16, %d, v16" % WS_FLAG)
        a("%s:" % lab)
        a("buffer_load_dword v17, v16, s[%d:%d], 0 offen sc1\nbuffer_load_dword v18, v16, s[%d:%d], 0 offen offset:2048 sc1\ns_waitcnt vmcnt(0)" % (sWS, sWS + 3, sWS, sWS + 3))
        a("v_and_b32 v17, v17, v18\nv_cmp_eq_u32 vcc, 1, v17")
    a("s_cmp_eq_u64 vcc, -1\ns_cbranch_scc1 L_p2wait")
    a("s_add_u32 s%d, s%d, 1\ns_cmp_gt_u32 s%d, 100000\ns_cbranch_scc1 L_p2wait" % (sCNT, sCNT, sCNT))
    if OPT["sleep"]: a("s_sleep %d" % OPT["sleep"])
    a("s_branch %s" % lab)

a("s_cmp_eq_u32 s%d, 0\ns_cbranch_scc0 L_loaderB" % sBR)
loader(0)
a("L_loaderB:")
loader(1)

a("L_p2wait:")
vA2 = 112
vOP2, vOUT, vRED = 120, 121, 122
aOP, aWO = 0, 32
vACC = 8
a("v_and_b32 v1, 15, v0\nv_lshrrev_b32 v2, 4, v0")
a("s_and_b32 s%d, s%d, 3\ns_lshr_b32 s%d, s%d, 2" % (sT0, sWAVE, sT1, sWAVE))
a("s_lshl_b32 s%d, s%d, 2\ns_add_u32 s%d, s%d, s%d\ns_lshl_b32 s%d, s%d, 14" % (sT2, sRB, sT2, sT2, sT0, sT2, sT2))
a("s_lshl_b32 s%d, s%d, 13\ns_add_u32 s%d, s%d, s%d\ns_lshl_b32 s%d, s%d, 21\ns_add_u32 s%d, s%d, s%d\ns_add_u32 s%d, s%d, 0x%x" % (sT3, sT1, sT2, sT2, sT3, sT3, sBR, sT2, sT2, sT3, sT2, sT2, WS_OP))
a("v_lshl_add_u32 v%d, v0, 4, s%d" % (vOP2, sT2))
a("v_bfe_u32 v3, v0, 2, 2\nv_and_b32 v4, 3, v0\nv_and_b32 v5, 1, v2")
a("v_lshl_or_b32 v6, v5, 2, v3\nv_lshlrev_b32 v6, 5, v6\nv_lshl_add_u32 v6, v4, 3, v6")
a("s_cmp_eq_u32 s%d, 0\ns_cbranch_scc1 L_rowA" % sBR)
a("v_lshrrev_b32 v7, 1, v2\nv_lshlrev_b32 v7, 3, v7\nv_lshl_add_u32 v7, v5, 4, v7\nv_add_u32 v7, v7, v3\ns_branch L_rowX")
a("L_rowA:\nv_lshl_add_u32 v7, v2, 2, v3\nL_rowX:")
a("v_lshl_add_u32 v6, v7, 8, v6")
a("s_lshl_b32 s%d, s%d, 16\ns_add_u32 s%d, s%d, %d\nv_add_u32 v6, s%d, v6" % (sT2, sT1, sT2, sT2, WO_BASE, sT2))
for c8 in range(8): a("v_xor_b32 v%d, %d, v6" % (vA2 + c8, c8 << 5))
a("s_lshl_b32 s%d, s%d, 6\ns_lshr_b32 s%d, s%d, 1\ns_lshl_b32 s%d, s%d, 5\ns_add_u32 s%d, s%d, s%d\ns_and_b32 s%d, s%d, 1\ns_add_u32 s%d, s%d, s%d" % (sT2, sRB, sT3, sT0, sT3, sT3, sT2, sT2, sT3, sT3, sT0, sT2, sT2, sT3))
a("s_lshl_b32 s%d, s%d, 11\ns_lshl_b32 s%d, s%d, 10\ns_add_u32 s%d, s%d, s%d\ns_lshl_b32 s%d, s%d, 8\ns_add_u32 s%d, s%d, s%d\ns_lshl_b32 s%d, s%d, 7\ns_add_u32 s%d, s%d, s%d" % (sT2, sT2, sT3, sBR, sT2, sT2, sT3, sT3, sCT, sT2, sT2, sT3, sT3, sT1, sT2, sT2, sT3))
a("v_lshlrev_b32 v3, 12, v1\nv_and_b32 v4, 1, v2\nv_lshl_add_u32 v3, v4, 5, v3\nv_lshrrev_b32 v4, 1, v2\nv_lshl_add_u32 v3, v4, 4, v3\nv_add_u32 v%d, s%d, v3" % (vOUT, sT2))
a("s_lshl_b32 s%d, s%d, 12\ns_add_u32 s%d, s%d, %d\nv_lshl_add_u32 v%d, v0, 4, s%d" % (sT2, sWAVE, sT2, sT2, WO_BASE, vRED, sT2))
a("v_xor_b32 v%d, 0x4000, v%d" % (vRED + 1, vRED))
a("s_movk_i32 s%d, 0x1000" % sT5)
a("s_barrier")
stamp(7)
for jj in range(8):
    a("buffer_load_dwordx4 %s, v%d, s[%d:%d], %s offen offset:%d sc1" % (ar(aOP + 4 * jj, 4), vOP2, sWS, sWS + 3, "0" if jj < 4 else "s%d" % sT5, (jj & 3) * 1024))
a("s_cmp_eq_u32 s%d, 0\ns_cbranch_scc1 L_p2A" % sBR)

def wo_reads(jj, rdstep):
    out = []
    for c8 in range(8):
        for rd in range(2):
            out.append("ds_read_b64_tr_b16 %s, v%d offset:%d" % (ar(aWO + 32 * (jj & 1) + 4 * c8 + 2 * rd, 2), vA2 + c8, jj * 8192 + rd * rdstep))
    return out

rds = wo_reads(0, 1024)
for x in rds: a(x)
for jj in range(8):
    nxt = wo_reads(jj + 1, 1024) if jj < 7 else []
    a("s_waitcnt vmcnt(%d)" % (7 - jj))
    for c8 in range(8):
        a("s_waitcnt lgkmcnt(%d)" % (14 if jj < 7 else 14 - 2 * c8))
        a("v_mfma_f32_16x16x32_bf16 %s, %s, %s, %s" % (vr(vACC + 4 * c8, 4), ar(aWO + 32 * (jj & 1) + 4 * c8, 4), ar(aOP + 4 * jj, 4), "0" if jj == 0 else vr(vACC + 4 * c8, 4)))
        for x in nxt[2 * c8:2 * c8 + 2]: a(x)
a("s_branch L_p2red")

a("L_p2A:")
vKL = 124
a("s_lshl_b32 s%d, s%d, 12\ns_add_u32 s%d, s%d, 0x%x\nv_lshl_add_u32 v3, v0, 2, s%d" % (sT2, sWAVE, sT2, sT2, WS_KV, sT2))
for i in range(16):
    a("buffer_load_dword v%d, v3, s[%d:%d], 0 offen offset:%d sc1" % (vKL + i, sWS, sWS + 3, i * 256))
a("s_lshl_b32 s%d, s%d, 8\ns_add_u32 s%d, s%d, 0x%x" % (sT2, sWAVE, sT2, sT2, WS_Z))
a("v_and_b32 v4, 1, v2\nv_lshlrev_b32 v5, 6, v4\nv_lshrrev_b32 v6, 1, v2\nv_lshl_add_u32 v5, v6, 5, v5\nv_add_u32 v5, s%d, v5" % sT2)
for j2 in range(2):
    for hf in range(2):
        a("buffer_load_dwordx4 %s, v5, s[%d:%d], 0 offen offset:%d sc1" % (vr(140 + 8 * j2 + 4 * hf, 4), sWS, sWS + 3, j2 * 128 + hf * 16))
vM0, vMZ = 156, 157
a("v_cmp_eq_u32 vcc, 0, v4\nv_cndmask_b32_e64 v%d, 0, -1, vcc" % vM0)
a("v_lshrrev_b32 v6, 3, v1\nv_cmp_eq_u32 vcc, v6, v4\nv_cndmask_b32_e64 v%d, 0, -1, vcc" % vMZ)
a("s_lshl_b32 s%d, s%d, 11\nv_lshl_add_u32 v7, v0, 4, s%d" % (sT2, sWAVE, sT2))
for x in wo_reads(0, 4096): a(x)
a("s_waitcnt vmcnt(0)")
for j2 in range(2):
    b = vKL + 8 * j2
    d = 40 + 8 * j2
    a("v_cvt_pk_bf16_f32 v%d, v%d, v%d\nv_cvt_pk_bf16_f32 v%d, v%d, v%d" % (d, b, b + 1, d + 1, b + 2, b + 3))
    a("v_cvt_pk_bf16_f32 v%d, v%d, v%d\nv_cvt_pk_bf16_f32 v%d, v%d, v%d" % (d + 2, b + 4, b + 5, d + 3, b + 6, b + 7))
    z = 140 + 8 * j2
    for i in range(4): a("v_cvt_pk_bf16_f32 v%d, v%d, v%d" % (d + 4 + i, z + 2 * i, z + 2 * i + 1))
    a("v_permlane16_swap_b32 v%d, v%d\nv_permlane16_swap_b32 v%d, v%d" % (d, d + 2, d + 1, d + 3))
    for i in range(4): a("v_and_b32 v%d, v%d, v%d" % (d + 4 + i, d + 4 + i, vMZ))
    a("ds_write_b128 v7, %s offset:%d" % (vr(d, 4), LDS_K + j2 * 1024))
    a("ds_write_b128 v7, %s offset:%d" % (vr(d + 4, 4), LDS_Z + j2 * 1024))
a("s_waitcnt lgkmcnt(0)")
a("s_barrier")
stamp(8)
a("s_lshr_b32 s%d, s%d, 2\ns_lshl_b32 s%d, s%d, 13\nv_lshl_add_u32 v7, v0, 4, s%d" % (sT2, sWAVE, sT2, sT2, sT2))
a("s_mov_b32 s%d, 0x%x" % (sC2, EPS))
vKF, vZF, vA0, vA1, vN0, vN1, vDN, vRV, vBOP = 40, 48, 56, 60, 64, 68, 72, 76, 80
def kz_reads(jj):
    return ["ds_read_b128 %s, v7 offset:%d" % (vr(vKF + 4 * (jj & 1), 4), LDS_K + jj * 1024),
            "ds_read_b128 %s, v7 offset:%d" % (vr(vZF + 4 * (jj & 1), 4), LDS_Z + jj * 1024)]
def ocalc(jj):
    kf, zf, bop = vKF + 4 * (jj & 1), vZF + 4 * (jj & 1), vBOP + 4 * (jj & 1)
    s = []
    for i in range(4): s.append("v_and_b32 v%d, v%d, v%d" % (vA0 + i, kf + i, vM0))
    s.append("v_mfma_f32_16x16x32_bf16 %s, %s, %s, 0" % (vr(vDN, 4), vr(zf, 4), ar(aOP + 4 * jj, 4)))
    for i in range(4): s.append("v_xor_b32 v%d, v%d, v%d" % (vA1 + i, kf + i, vA0 + i))
    s.append("v_mfma_f32_16x16x32_bf16 %s, %s, %s, 0" % (vr(vN0, 4), vr(vA0, 4), ar(aOP + 4 * jj, 4)))
    s.append("v_mfma_f32_16x16x32_bf16 %s, %s, %s, 0" % (vr(vN1, 4), vr(vA1, 4), ar(aOP + 4 * jj, 4)))
    s.append("v_add_f32 v%d, s%d, v%d" % (vRV, sC2, vDN))
    s.append("v_rcp_f32 v%d, v%d" % (vRV, vRV))
    s.append("v_mov_b32 v%d, v%d" % (vRV + 1, vRV))
    s.append("v_permlane32_swap_b32 v%d, v%d" % (vRV, vRV + 1))
    for r in range(4): s.append("v_mul_f32 v%d, v%d, v%d" % (vN0 + r, vN0 + r, vRV))
    for r in range(4): s.append("v_mul_f32 v%d, v%d, v%d" % (vN1 + r, vN1 + r, vRV + 1))
    s.append("v_cvt_pk_bf16_f32 v%d, v%d, v%d" % (bop, vN0, vN0 + 1))
    s.append("v_cvt_pk_bf16_f32 v%d, v%d, v%d" % (bop + 1, vN0 + 2, vN0 + 3))
    s.append("v_cvt_pk_bf16_f32 v%d, v%d, v%d" % (bop + 2, vN1, vN1 + 1))
    s.append("v_cvt_pk_bf16_f32 v%d, v%d, v%d" % (bop + 3, vN1 + 2, vN1 + 3))
    return s
for x in kz_reads(0) + kz_reads(1): a(x)
a("s_waitcnt lgkmcnt(0)")
for x in ocalc(0): a(x)
for jj in range(8):
    a("s_waitcnt lgkmcnt(0)")
    g = []
    nxt = (wo_reads(jj + 1, 4096) if jj < 7 else [])
    kz = kz_reads(jj + 2) if jj < 6 else []
    bop = vBOP + 4 * (jj & 1)
    mf = ["v_mfma_f32_16x16x32_bf16 %s, %s, %s, %s" % (vr(vACC + 4 * c8, 4), ar(aWO + 32 * (jj & 1) + 4 * c8, 4), vr(bop, 4), "0" if jj == 0 else vr(vACC + 4 * c8, 4)) for c8 in range(8)]
    oc = ocalc(jj + 1) if jj < 7 else []
    streams = [oc, mf, nxt + kz]
    for x in sched.interleave(streams, weights=[3, 1, 2]): a(x)

a("L_p2red:")
stamp(9)
a("s_barrier")
a("s_lshr_b32 s%d, s%d, 2" % (sT1, sWAVE))
a("s_cmp_eq_u32 s%d, 0\ns_cbranch_scc0 L_red1" % sT1)
def red(own, other):
    for i in range(4): a("ds_write_b128 v%d, %s offset:%d" % (vRED, vr(vACC + 4 * (other + i), 4), i * 1024))
    a("s_waitcnt lgkmcnt(0)")
    a("s_barrier")
    for i in range(4): a("ds_read_b128 %s, v%d offset:%d" % (vr(40 + 4 * i, 4), vRED + 1, i * 1024))
    for i in range(4):
        a("s_waitcnt lgkmcnt(%d)" % (3 - i))
        for r in range(4): a("v_add_f32 v%d, v%d, v%d" % (40 + 4 * i + r, 40 + 4 * i + r, vACC + 4 * (own + i) + r))
        a("v_cvt_pk_bf16_f32 v%d, v%d, v%d\nv_cvt_pk_bf16_f32 v%d, v%d, v%d" % (60 + 2 * i, 40 + 4 * i, 41 + 4 * i, 61 + 2 * i, 42 + 4 * i, 43 + 4 * i))
        if i & 1:
            b = 60 + 2 * (i - 1)
            a("v_permlane16_swap_b32 v%d, v%d\nv_permlane16_swap_b32 v%d, v%d" % (b, b + 2, b + 1, b + 3))
            a("buffer_store_dwordx4 %s, v%d, s[%d:%d], 0 offen offset:%d" % (vr(b, 4), vOUT, sOUT, sOUT + 3, (i >> 1) * 64))
red(0, 4)
a("s_branch L_fin")
a("L_red1:")
red(4, 0)
a("L_fin:")
if STAMPS:
    stamp(10)
    a("s_waitcnt vmcnt(0)")
    stamp(11)
    a("s_waitcnt lgkmcnt(0)")
    a("s_and_b32 s%d, s%d, 3\ns_cmp_eq_u32 s%d, 0\ns_cbranch_scc0 L_end" % (sT0, sWAVE, sT0))
    a("s_lshr_b32 s%d, s%d, 2\ns_lshl_b32 s%d, s2, 1\ns_add_u32 s%d, s%d, s%d\ns_mul_i32 s%d, s%d, %d\ns_add_u32 s%d, s%d, 0x%x" % (sT0, sWAVE, sT1, sT0, sT0, sT1, sT0, sT0, NSTAMP * 8, sT0, sT0, WS_STAMP))
    a("v_mov_b32 v5, s%d" % sT0)
    for j in range(NSTAMP):
        a("v_mov_b32 v6, s%d\nv_mov_b32 v7, s%d" % (sSTB + 2 * j, sSTB + 2 * j + 1))
        a("buffer_store_dwordx2 v[6:7], v5, s[%d:%d], 0 offen offset:%d" % (sWS, sWS + 3, 8 * j))
a("L_end:\ns_endpgm")

body = a.finalize()
hdr = open("concat_heads__linear_attn_block__sliding_local_dilated__prompt.s.ref").read().split("; Override launch")[0]
txt = hdr + "; @launch grid=(256,1,1) block=(512,1,1) lds=%d\n" % LDS_BYTES
txt += '.amdgcn_target "amdgcn-amd-amdhsa--gfx950"\n.text\n.globl %s\n.p2align 8\n.type %s,@function\n%s:\n' % (KN, KN, KN)
txt += body
txt += ('.section .rodata,"a"\n.p2align 6\n.amdhsa_kernel %s\n  .amdhsa_next_free_vgpr 256\n  .amdhsa_next_free_sgpr 102\n'
        '  .amdhsa_accum_offset 160\n  .amdhsa_group_segment_fixed_size 0\n  .amdhsa_kernarg_size 72\n  .amdhsa_user_sgpr_count 2\n'
        '  .amdhsa_user_sgpr_kernarg_segment_ptr 1\n  .amdhsa_system_sgpr_workgroup_id_x 1\n  .amdhsa_float_denorm_mode_32 3\n.end_amdhsa_kernel\n') % KN
open(sys.argv[1], "w").write(txt)
print("instructions:", a.count)
```

```python
import sys
from isa import Asm, Ins
import sched

KN = "concat_heads__linear_attn_block__sliding_local_dilated__prompt_kernel"
OPT = dict(stamps=0, rot=1, stop=99, prio=0, sleep=2)
for x in sys.argv[2:]:
    k, v = x.split("="); OPT[k] = int(v)
STAMPS = OPT["stamps"]
ATOM = " sc1" if OPT.get("atomsc1", 1) else ""

WS_FLAG = 0x0
WS_KV = 0x4000
WS_Z = 0xC000
WS_OP = 0x100000
WS_STAMP = 128 << 20
WS_BYTES = 268435456
SLOT = 43008
WOFF = 18432
WO_BASE = 32768
LDS_K = 0
LDS_Z = 16384
LDS_BYTES = 163840
BIG = 0xf149f2ca
EPS = 0x358637bd
LOG2E = 0x3fb8aa3b
NEG_EPS_LOG2E = 0xb5c1a4b9
import struct
def f2u(f): return struct.unpack("<I", struct.pack("<f", f))[0]
import math
LOG2E = f2u(math.log2(math.e)); EPS = f2u(1e-6); BIG = f2u(-1e30)
NEG_EPS_LOG2E = f2u(-1e-6 * math.log2(math.e))
SCALE_C = f2u(0.25 * math.log2(math.e))

sX, sW, sWO, sOUT, sWS, sDBG = 20, 24, 28, 32, 36, 40
sBR, sRT, sHG, sWAVE, sRB, sCT, sLW, sROT = 44, 45, 46, 47, 48, 49, 50, 51
sT0, sT1, sT2, sT3, sT4, sT5 = 52, 53, 54, 55, 56, 57
sX0, sX1, sH, sW0, sW1, sW2, sKC = 58, 59, 60, 61, 62, 63, 64
sM, sCNT, sSAVE = 65, 66, 68
sC0, sC1, sC2, sC3 = 70, 71, 72, 73
sSTB = 76
NSTAMP = 12

a = Asm()

def stamp(i):
    if STAMPS:
        a("s_memrealtime s[%d:%d]" % (sSTB + 2 * i, sSTB + 2 * i + 1))

def stamp_wait():
    if STAMPS:
        a("s_waitcnt lgkmcnt(0)")

def srd(d, base, nbytes):
    a("s_mov_b32 s%d, s%d\ns_and_b32 s%d, s%d, 0xffff\ns_mov_b32 s%d, 0x%x\ns_mov_b32 s%d, 0x00020000" % (d, base, d + 1, base + 1, d + 2, nbytes, d + 3))

def vr(b, n=1):
    return "v%d" % b if n == 1 else "v[%d:%d]" % (b, b + n - 1)
def ar(b, n=1):
    return "a%d" % b if n == 1 else "a[%d:%d]" % (b, b + n - 1)

a("s_cmp_ge_u32 s2, 256\ns_cbranch_scc1 L_end")
if STAMPS:
    for i in range(2 * NSTAMP): a("s_mov_b32 s%d, 0" % (sSTB + i))
stamp(0)
a("s_and_b32 s%d, s2, 7" % sT0)
a("s_lshr_b32 s%d, s2, 3" % sT1)
a("s_lshr_b32 s%d, s%d, 2" % (sBR, sT0))
a("s_mul_i32 s%d, s%d, 24" % (sT2, sBR))
a("s_add_u32 s18, s0, s%d\ns_addc_u32 s19, s1, 0" % sT2)
a("s_load_dwordx4 s[4:7], s[18:19], 0")
a("s_load_dwordx2 s[8:9], s[18:19], 16")
a("s_load_dwordx4 s[12:15], s[0:1], 48")
a("s_load_dwordx2 s[16:17], s[0:1], 64")
a("v_lshrrev_b32 v1, 6, v0\nv_and_b32 v0, 63, v0")
a("s_and_b32 s%d, s%d, 1\ns_lshl_b32 s%d, s%d, 3\ns_and_b32 s%d, s%d, 7\ns_add_u32 s%d, s%d, s%d" % (sT2, sT0, sT2, sT2, sT3, sT1, sRT, sT2, sT3))
a("v_readfirstlane_b32 s%d, v1" % sWAVE)
a("s_lshr_b32 s%d, s%d, 1\ns_and_b32 s%d, s%d, 1\ns_lshl_b32 s%d, s%d, 2\ns_lshr_b32 s%d, s%d, 3\ns_add_u32 s%d, s%d, s%d" % (sT2, sT0, sT2, sT2, sT2, sT2, sT4, sT1, sHG, sT2, sT4))
a("s_and_b32 s%d, s%d, 3\ns_lshl_b32 s%d, s%d, 3\ns_lshr_b32 s%d, s%d, 2\ns_add_u32 s%d, s%d, s%d" % (sT2, sT0, sT2, sT2, sT5, sT1, sRB, sT2, sT5))
a("s_and_b32 s%d, s%d, 3" % (sCT, sT1))
if OPT["rot"] == 1:
    a("s_lshl_b32 s%d, s%d, 1\ns_add_u32 s%d, s%d, s%d\ns_and_b32 s%d, s%d, 7" % (sROT, sT4, sROT, sROT, sT3, sROT, sROT))
elif OPT["rot"] == 2:
    a("s_and_b32 s%d, s%d, 1\ns_lshl_b32 s%d, s%d, 2" % (sROT, sT3, sROT, sROT))
else:
    a("s_mov_b32 s%d, 0" % sROT)
a("s_and_b32 s%d, s%d, 3" % (sLW, sWAVE))
a("s_waitcnt lgkmcnt(0)")
stamp(1)
srd(sX, 4, 2048 * 1024)
srd(sW, 6, 512 * 3072)
srd(sWO, 8, 512 * 1024)
srd(sOUT, 12, 2048 * 2048)
srd(sDBG, 14, 256)
srd(sWS, 16, WS_BYTES)
a("s_cmp_ge_u32 s%d, 4\ns_cbranch_scc1 L_loader" % sWAVE)

vQ, vK, vKH, vV, vVH = 8, 40, 72, 76, 108
vXR = 112
vWR = 118
vB = 121
vBC, vBP, vBH0, vBH1, vMC = 122, 126, 130, 134, 138
vTMP = 140
aXF, aWF = 0, 36

a("v_and_b32 v1, 15, v0\nv_lshrrev_b32 v2, 4, v0")
a("v_lshrrev_b32 v3, 1, v1")
a("v_xor_b32 v4, v3, v2")
a("v_lshlrev_b32 v5, 7, v1\nv_lshl_add_u32 v5, v4, 4, v5")
for s_ in range(3):
    a("v_add_u32 v%d, %d, v5" % (vXR + 2 * s_, s_ * SLOT))
    a("v_xor_b32 v%d, 64, v%d" % (vXR + 2 * s_ + 1, vXR + 2 * s_))
a("v_bfe_u32 v3, v0, 2, 2\nv_and_b32 v4, 3, v0")
a("v_lshl_add_u32 v5, v2, 3, v3\nv_lshlrev_b32 v5, 7, v5")
a("v_lshrrev_b32 v6, 1, v3\nv_and_b32 v7, 1, v2\nv_lshl_or_b32 v6, v7, 1, v6")
a("v_xor_b32 v6, s%d, v6" % sWAVE)
a("v_lshl_add_u32 v5, v6, 5, v5\nv_lshl_add_u32 v5, v4, 3, v5")
for s_ in range(3):
    a("v_add_u32 v%d, %d, v5" % (vWR + s_, s_ * SLOT + WOFF))
a("s_cmp_eq_u32 s%d, 0\ns_cbranch_scc0 L_mainB" % sBR)

def main_loop(br):
    NT = 9 if br else 8
    lg = []
    def rd_x(step, t):
        c, st = step >> 1, step & 1
        s_ = c % 3
        a("ds_read_b128 %s, v%d offset:%d" % (ar(aXF + 4 * t, 4), vXR + 2 * s_ + st, t * 2048)); lg.append(("x", step, t))
    def rd_w(step, i):
        c, st = step >> 1, step & 1
        s_ = c % 3
        part, rd = i >> 1, i & 1
        a("ds_read_b64_tr_b16 %s, v%d offset:%d" % (ar(aWF + 12 * (step & 1) + 4 * part + 2 * rd, 2), vWR + s_, part * 8192 + st * 4096 + rd * 512)); lg.append(("w", step, i))
    def need(keys):
        last = -1
        for i, k in enumerate(lg):
            if k in keys: last = i
        if last >= 0:
            n = len(lg) - 1 - last
            a("s_waitcnt lgkmcnt(%d)" % min(n, 15))
            if n > 15: n = 15
            del lg[:len(lg) - n]
    a("s_barrier")
    stamp(2)
    for i in range(6): rd_w(0, i)
    for t in range(NT): rd_x(0, t)
    for step in range(16):
        st = step & 1
        last = step == 15
        pend = []
        if not last:
            pend = [("w", i) for i in range(6)]
        deferred = []
        for t in range(NT):
            keys = [("x", step, t)]
            if t == 0: keys += [("w", step, i) for i in range(6)]
            need(keys)
            wb = aWF + 12 * (step & 1)
            xf = ar(aXF + 4 * t, 4)
            def cop(acc, eps):
                if step == 0: return vr(vTMP, 4) if eps else "0"
                return vr(acc, 4)
            if t < 8:
                a("v_mfma_f32_16x16x32_bf16 %s, %s, %s, %s" % (vr(vQ + 4 * t, 4), ar(wb, 4), xf, cop(vQ + 4 * t, br == 0)))
                kacc, vacc = vK + 4 * t, vV + 4 * t
            else:
                kacc, vacc = vKH, vVH
            if br:
                a("v_mfma_f32_16x16x32_bf16 %s, %s, %s, %s" % (vr(kacc, 4), ar(wb + 4, 4), xf, cop(kacc, False)))
            else:
                a("v_mfma_f32_16x16x32_bf16 %s, %s, %s, %s" % (vr(kacc, 4), xf, ar(wb + 4, 4), cop(kacc, True)))
            a("v_mfma_f32_16x16x32_bf16 %s, %s, %s, %s" % (vr(vacc, 4), xf, ar(wb + 8, 4), cop(vacc, False)))
            if st == 1 and t <= 2:
                if not last: deferred.append(("x", t))
                if t == 2:
                    a("s_waitcnt lgkmcnt(0)"); del lg[:]
                    a("s_barrier")
                    pend = pend + deferred if not last else []
                    if not last:
                        k = 0
                        while k < 3 and pend:
                            kind, i = pend.pop(0); rd_w(step + 1, i) if kind == "w" else rd_x(step + 1, i); k += 1
                continue
            if last: continue
            npend = 2
            if st == 1:
                pend.append(("x", t))
                k = 0
                while k < 3 and pend:
                    kind, i = pend.pop(0); rd_w(step + 1, i) if kind == "w" else rd_x(step + 1, i); k += 1
            else:
                rd_x(step + 1, t)
                k = 0
                while k < npend and pend:
                    kind, i = pend.pop(0); rd_w(step + 1, i); k += 1
        while pend:
            kind, i = pend.pop(0); rd_w(step + 1, i) if kind == "w" else rd_x(step + 1, i)
    stamp(3)

def store_op(base0, npairs, first_pair=0):
    pass

def op_store_addr(vd):
    a("v_and_b32 v3, 1, v2\nv_lshlrev_b32 v3, 14, v3")
    a("v_lshrrev_b32 v4, 1, v2\nv_lshl_add_u32 v3, v4, 9, v3\nv_lshl_add_u32 v3, v1, 4, v3")
    a("s_lshl_b32 s%d, s%d, 17" % (sT0, sRT))
    a("s_lshl_b32 s%d, s%d, 11\ns_add_u32 s%d, s%d, s%d" % (sT1, sHG, sT0, sT0, sT1))
    a("s_lshr_b32 s%d, s%d, 1\ns_lshl_b32 s%d, s%d, 10\ns_add_u32 s%d, s%d, s%d" % (sT1, sWAVE, sT1, sT1, sT0, sT0, sT1))
    a("s_and_b32 s%d, s%d, 1\ns_lshl_b32 s%d, s%d, 8\ns_add_u32 s%d, s%d, s%d" % (sT1, sWAVE, sT1, sT1, sT0, sT0, sT1))
    a("s_lshl_b32 s%d, s%d, 21\ns_add_u32 s%d, s%d, s%d\ns_add_u32 s%d, s%d, 0x%x" % (sT1, sBR, sT0, sT0, sT1, sT0, sT0, WS_OP))
    a("v_add_u32 v%d, s%d, v3" % (vd, sT0))

vOPA = 7
vKVA = 6

a("L_mainA:")
a("v_mov_b32 v%d, 0x%x" % (vTMP, EPS))
for i in range(1, 4): a("v_mov_b32 v%d, v%d" % (vTMP + i, vTMP))
op_store_addr(vOPA)
a("s_lshl_b32 s%d, s%d, 2\ns_add_u32 s%d, s%d, s%d" % (sT0, sHG, sT0, sT0, sWAVE))
a("s_lshl_b32 s%d, s%d, 10\ns_add_u32 s%d, s%d, 0x%x" % (sT1, sT0, sT1, sT1, WS_KV))
a("v_lshl_add_u32 v%d, v0, 2, s%d" % (vKVA, sT1))
a("s_lshl_b32 s%d, s%d, 6\ns_add_u32 s%d, s%d, 0x%x" % (sT1, sT0, sT1, sT1, WS_Z))
a("v_lshl_add_u32 v5, v0, 2, s%d" % sT1)
a("s_mov_b32 s%d, 0x%x\ns_mov_b32 s%d, 0x%x\ns_mov_b32 s%d, 0x%x" % (sC0, LOG2E, sC1, NEG_EPS_LOG2E, sC2, EPS))
main_loop(0)

def phi_stream(r0, dst, t0, t1):
    s = []
    for i in range(4):
        s.append("v_fma_f32 v%d, v%d, s%d, v%d" % (t0 + i, r0 + i, sC0, 4))
    for i in range(4):
        s.append("v_exp_f32_e64 v%d, v%d clamp" % (t0 + i, t0 + i))
    for i in range(4):
        s.append("v_max_f32 v%d, s%d, v%d" % (r0 + i, sC2, r0 + i))
    for i in range(4):
        s.append("v_add_f32 v%d, v%d, v%d" % (r0 + i, r0 + i, t0 + i))
    s.append("v_cvt_pk_bf16_f32 v%d, v%d, v%d" % (dst, r0, r0 + 1))
    s.append("v_cvt_pk_bf16_f32 v%d, v%d, v%d" % (dst + 1, r0 + 2, r0 + 3))
    return s

a("v_mov_b32 v4, s%d" % sC1)
vKP, vVP, vQP = 112, 128, 144
ONES = 72
for i in range(4): a("v_mov_b32 v%d, 0x3f803f80" % (ONES + i))
TQ = [108, 72 + 0]
streams = []
tq = [160 - 0]
for t in range(0, 8, 2):
    s0 = phi_stream(vK + 4 * t, vKP + 2 * t, 108, None)
    s1 = phi_stream(vK + 4 * (t + 1), vKP + 2 * (t + 1), 144, None)
    sv = ["v_cvt_pk_bf16_f32 v%d, v%d, v%d" % (vVP + 2 * tt + i, vV + 4 * tt + 2 * i, vV + 4 * tt + 2 * i + 1) for tt in (t, t + 1) for i in range(2)]
    for x in sched.interleave([s0, s1, sv]): a(x)
    acc_kv, acc_z = 76, 80
    cop = lambda r: "0" if t == 0 else vr(r, 4)
    a("v_mfma_f32_16x16x32_bf16 %s, %s, %s, %s" % (vr(acc_kv, 4), vr(vKP + 2 * t, 4), vr(vVP + 2 * t, 4), cop(acc_kv)))
    a("v_mfma_f32_16x16x32_bf16 %s, %s, %s, %s" % (vr(acc_z, 4), vr(ONES, 4), vr(vKP + 2 * t, 4), cop(acc_z)))
stamp(4)
for r in range(4):
    a("buffer_atomic_add_f32 v%d, v%d, s[%d:%d], 0 offen offset:%d%s" % (76 + r, vKVA, sWS, sWS + 3, r * 256, ATOM))
a("s_mov_b64 s[%d:%d], exec\ns_mov_b64 exec, 0xffff" % (sSAVE, sSAVE + 1))
a("buffer_atomic_add_f32 v80, v5, s[%d:%d], 0 offen%s" % (sWS, sWS + 3, ATOM))
a("s_mov_b64 exec, s[%d:%d]" % (sSAVE, sSAVE + 1))
for t in range(0, 8, 2):
    s0 = phi_stream(vQ + 4 * t, vQP + 2 * t, 108, None)
    s1 = phi_stream(vQ + 4 * (t + 1), vQP + 2 * (t + 1), 84, None)
    for x in sched.interleave([s0, s1]): a(x)
    b = vQP + 2 * t
    a("v_permlane16_swap_b32 v%d, v%d\nv_permlane16_swap_b32 v%d, v%d" % (b, b + 2, b + 1, b + 3))
    a("s_mov_b32 s%d, %d" % (sT0, t * 16384))
    a("buffer_store_dwordx4 %s, v%d, s[%d:%d], s%d offen sc1" % (vr(b, 4), vOPA, sWS, sWS + 3, sT0))
stamp(5)
a("s_waitcnt vmcnt(0)")
a("s_barrier")
a("s_branch L_p2wait")

a("L_mainB:")
op_store_addr(vOPA)
a("v_lshlrev_b32 v3, 2, v2")
a("v_mov_b32 v6, 0x%x" % BIG)
for r in range(4):
    a("v_add_u32 v4, %d, v3" % r)
    a("v_sub_u32 v5, v1, v4")
    a("v_cmp_gt_u32 vcc, 8, v5")
    a("v_cndmask_b32_e64 v%d, v6, 0, vcc" % (vBC + r))
    if r % 2 == 0:
        a("v_cndmask_b32_e64 v%d, 0, -1, vcc\nv_and_b32 v%d, 0xffff, v%d" % (vMC + r // 2, vMC + r // 2, vMC + r // 2))
    else:
        a("v_cndmask_b32_e64 v5, 0, -1, vcc\nv_and_b32 v5, 0xffff0000, v5\nv_or_b32 v%d, v%d, v5" % (vMC + r // 2, vMC + r // 2))
    a("v_sub_u32 v5, v4, v1")
    a("v_cmp_le_i32 vcc, 9, v5")
    a("v_cndmask_b32_e64 v%d, v6, 0, vcc" % (vBP + r))
    a("v_cmp_le_i32 vcc, 1, v5\nv_cndmask_b32_e64 v%d, v6, 0, vcc" % (vBH0 + r))
    a("v_cmp_ge_u32 vcc, 7, v4\nv_cndmask_b32_e64 v%d, v6, v%d, vcc" % (vBH0 + r, vBH0 + r))
    a("v_mov_b32 v%d, v%d" % (vBH1 + r, vBP + r))
a("s_cmp_eq_u32 s%d, 0\ns_cbranch_scc0 L_nomask" % sRT)
for r in range(4):
    a("v_mov_b32 v%d, v6\nv_mov_b32 v%d, v6" % (vBH0 + r, vBH1 + r))
a("L_nomask:")
a("s_mov_b32 s%d, 0x%x" % (sC0, SCALE_C))
main_loop(1)
vVP = 140; vKPb = 76; vQPb = 94
def VP(p, u): return vVP + 10 * p + 2 * (u + 1)
def KP(t): return vKPb + 2 * t
def QP(t): return vQPb + 2 * t
pk = lambda d, s: ["v_cvt_pk_bf16_f32 v%d, v%d, v%d" % (d, s, s + 1), "v_cvt_pk_bf16_f32 v%d, v%d, v%d" % (d + 1, s + 2, s + 3)]
for t in range(8):
    for x in pk(VP(t & 1, t >> 1), vV + 4 * t): a(x)
for x in pk(VP(0, -1), vVH): a(x)
a("v_mov_b32 v%d, v%d\nv_mov_b32 v%d, v%d" % (VP(1, -1), VP(0, -1), VP(1, -1) + 1, VP(0, -1) + 1))
for t in range(8):
    for x in pk(KP(t), vK + 4 * t): a(x)
for x in pk(KP(8), vKH): a(x)
for t in range(8):
    for x in pk(QP(t), vQ + 4 * t): a(x)
ONESB = 110
ONESB = 112
for i in range(4): a("v_mov_b32 v%d, 0x3f803f80" % (ONESB + i))
def unit(t, T):
    p, u = t & 1, t >> 1
    SP, SC, SM, m0, m1 = T, T + 4, T + 8, T + 12, T + 13
    tp = 8 if u == 0 else t - 2
    bias = (vBH0 if p == 0 else vBH1) if u == 0 else vBP
    s = []
    s.append("v_mfma_f32_16x16x16_bf16 %s, %s, %s, %s" % (vr(SP, 4), vr(KP(tp), 2), vr(QP(t), 2), vr(bias, 4)))
    s.append("v_mfma_f32_16x16x16_bf16 %s, %s, %s, %s" % (vr(SC, 4), vr(KP(t), 2), vr(QP(t), 2), vr(vBC, 4)))
    for r in range(4): s.append("v_max_f32 v%d, v%d, v%d" % (SC + r, SC + r, SP + r))
    s.append("v_max3_f32 v%d, v%d, v%d, v%d" % (m0, SC, SC + 1, SC + 2))
    s.append("v_max_f32 v%d, v%d, v%d" % (m0, m0, SC + 3))
    s.append("v_mov_b32 v%d, v%d" % (m1, m0))
    s.append("v_permlane16_swap_b32 v%d, v%d" % (m0, m1))
    s.append("v_max_f32 v%d, v%d, v%d" % (m0, m0, m1))
    s.append("v_mov_b32 v%d, v%d" % (m1, m0))
    s.append("v_permlane32_swap_b32 v%d, v%d" % (m0, m1))
    s.append("v_max_f32 v%d, v%d, v%d" % (m0, m0, m1))
    s.append("v_mul_f32 v%d, s%d, v%d" % (m0, sC0, m0))
    for r in range(4): s.append("v_fma_f32 v%d, v%d, s%d, -v%d" % (SC + r, SC + r, sC0, m0))
    for r in range(4): s.append("v_exp_f32 v%d, v%d" % (SC + r, SC + r))
    s.append("v_cvt_pk_bf16_f32 v%d, v%d, v%d" % (SC, SC, SC + 1))
    s.append("v_cvt_pk_bf16_f32 v%d, v%d, v%d" % (SC + 1, SC + 2, SC + 3))
    s.append("v_and_b32 v%d, v%d, v%d" % (SP + 2, SC, vMC))
    s.append("v_and_b32 v%d, v%d, v%d" % (SP + 3, SC + 1, vMC + 1))
    s.append("v_xor_b32 v%d, v%d, v%d" % (SP, SC, SP + 2))
    s.append("v_xor_b32 v%d, v%d, v%d" % (SP + 1, SC + 1, SP + 3))
    s.append("v_mfma_f32_16x16x32_bf16 %s, %s, %s, 0" % (vr(SM, 4), vr(ONESB, 4), vr(SP, 4)))
    s.append("v_mfma_f32_16x16x32_bf16 %s, %s, %s, 0" % (vr(SC, 4), vr(VP(p, u - 1), 4), vr(SP, 4)))
    s.append("v_rcp_f32 v%d, v%d" % (m0, SM))
    for r in range(4): s.append("v_mul_f32 v%d, v%d, v%d" % (SC + r, SC + r, m0))
    s.append("v_cvt_pk_bf16_f32 v%d, v%d, v%d" % (QP(t), SC, SC + 1))
    s.append("v_cvt_pk_bf16_f32 v%d, v%d, v%d" % (QP(t) + 1, SC + 2, SC + 3))
    return s
for grp in range(2):
    ss = [unit(4 * grp + i, 8 + 16 * i) for i in range(4)]
    for x in sched.interleave(ss): a(x)
    for u in (2 * grp, 2 * grp + 1):
        b = QP(2 * u)
        a("v_permlane16_swap_b32 v%d, v%d\nv_permlane16_swap_b32 v%d, v%d" % (b, b + 2, b + 1, b + 3))
        a("s_mov_b32 s%d, %d" % (sT0, 2 * u * 16384))
        a("buffer_store_dwordx4 %s, v%d, s[%d:%d], s%d offen sc1" % (vr(b, 4), vOPA, sWS, sWS + 3, sT0))
stamp(5)
a("s_waitcnt vmcnt(0)")
a("s_barrier")
a("s_branch L_p2wait")

a("L_loader:")
a("v_lshrrev_b32 v1, 3, v0\nv_and_b32 v2, 7, v0")
vXS, vHS, vWS_, vWOS = 8, 10, 12, 14
a("v_lshrrev_b32 v3, 1, v1")
for mh in range(2):
    a("v_or_b32 v4, %d, v3\nv_xor_b32 v4, v4, v2\nv_lshlrev_b32 v4, 4, v4" % (4 * mh))
    a("v_lshl_add_u32 v4, v1, 11, v4\nv_add_u32 v%d, %d, v4" % (vXS + mh, mh * 16 * 1024))
a("s_lshl_b32 s%d, s%d, 2\nv_add_u32 v4, s%d, v1" % (sT0, sLW, sT0))
a("v_and_b32 v5, 7, v4\nv_lshlrev_b32 v5, 1, v5\nv_lshrrev_b32 v6, 3, v4\nv_add_u32 v5, v5, v6")
a("s_lshl_b32 s%d, s%d, 7\ns_sub_u32 s%d, s%d, 16\nv_add_u32 v5, s%d, v5\nv_max_i32 v5, 0, v5" % (sT0, sRT, sT0, sT0, sT0))
a("v_lshrrev_b32 v6, 1, v4\nv_and_b32 v6, 7, v6\nv_xor_b32 v6, v6, v2\nv_lshlrev_b32 v6, 4, v6\nv_lshl_add_u32 v%d, v5, 10, v6" % vHS)
a("v_and_b32 v4, 1, v3\nv_lshrrev_b32 v5, 1, v2\nv_and_b32 v6, 1, v2")
a("v_mul_u32_u24 v7, 3072, v1")
for kp in range(2):
    a("v_or_b32 v16, %d, v4\nv_xor_b32 v16, v16, v5\nv_lshlrev_b32 v16, 5, v16\nv_lshl_add_u32 v16, v6, 4, v16" % (2 * kp))
    a("v_add_u32 v16, v16, v7\nv_add_u32 v%d, %d, v16" % (vWS_ + kp, kp * 8 * 3072))
a("v_lshrrev_b32 v3, 4, v0\nv_bfe_u32 v4, v0, 1, 3\nv_and_b32 v5, 1, v0")
a("s_lshl_b32 s%d, s%d, 8" % (sT0, sCT))
a("s_and_b32 s%d, s%d, 1" % (sT1, sLW))
for b in range(2):
    a("s_cmp_eq_u32 s%d, 0\ns_cselect_b32 s%d, s%d, %d\ns_lshl_b32 s%d, s%d, 2" % (sBR, sT2, sT1, b, sT2, sT2))
    a("v_or_b32 v6, s%d, v3\nv_xor_b32 v6, v6, v4\nv_lshlrev_b32 v6, 5, v6\nv_lshl_add_u32 v6, v5, 4, v6" % sT2)
    a("v_lshl_add_u32 v6, v3, 10, v6\nv_add_u32 v%d, s%d, v6" % (vWOS + b, sT0))

a("v_and_b32 v25, 7, v0\nv_lshlrev_b32 v25, 2, v25\nv_add_u32 v25, 128, v25\nv_mov_b32 v24, 0")
def dma(vaddr, srd_, soff, ldsreg_or_imm):
    a("s_mov_b32 m0, %s" % ldsreg_or_imm)
    a("buffer_load_dwordx4 v%d, s[%d:%d], s%d offen lds" % (vaddr, srd_, srd_ + 3, soff))

def loader(br):
    n = 11 if br else 10
    sLX, sLH, sLWb = 74, 75, 67
    a("s_lshl_b32 s%d, s%d, 12" % (sLX, sLW))
    a("s_lshl_b32 s%d, s%d, 9\ns_add_u32 s%d, s%d, 16384" % (sLH, sLW, sLH, sLH))
    a("s_lshl_b32 s%d, s%d, 11\ns_add_u32 s%d, s%d, %d" % (sLWb, sLW, sLWb, sLWb, WOFF))
    a("s_lshl_b32 s%d, s%d, 17\ns_lshl_b32 s%d, s%d, 15\ns_add_u32 s18, s%d, s%d" % (sT0, sRT, sT1, sLW, sT0, sT1))
    a("s_mul_i32 s%d, s%d, %d\ns_lshl_b32 s%d, s%d, 7\ns_add_u32 s19, s%d, s%d" % (sT0, sLW, 16 * 3072, sT1, sHG, sT0, sT1))
    def chunk(c):
        sl = (c % 3) * SLOT
        a("s_add_u32 s%d, s%d, %d\ns_and_b32 s%d, s%d, 7" % (sKC, sROT, c, sKC, sKC))
        a("s_lshl_b32 s%d, s%d, 7" % (sH, sKC))
        a("s_add_u32 s%d, s18, s%d\ns_add_u32 s%d, s%d, 1024" % (sX0, sH, sX1, sX0))
        a("s_mul_i32 s%d, s%d, %d\ns_add_u32 s%d, s19, s%d" % (sW0, sKC, 64 * 3072, sW0, sW0))
        a("s_add_u32 s%d, s%d, 1024\ns_add_u32 s%d, s%d, 2048" % (sW1, sW0, sW2, sW0))
        for part, sw in enumerate((sW0, sW1, sW2)):
            for kp in range(2):
                a("s_add_u32 m0, s%d, %d" % (sLWb, sl + part * 8192 + kp * 1024))
                a("buffer_load_dwordx4 v%d, s[%d:%d], s%d offen lds" % (vWS_ + kp, sW, sW + 3, sw))
        for pp, sx in enumerate((sX0, sX1)):
            for mh in range(2):
                a("s_add_u32 m0, s%d, %d" % (sLX, sl + pp * 2048 + mh * 1024))
                a("buffer_load_dwordx4 v%d, s[%d:%d], s%d offen lds" % (vXS + mh, sX, sX + 3, sx))
        if br:
            a("s_add_u32 m0, s%d, %d" % (sLH, sl))
            a("s_mov_b32 exec_hi, 0")
            a("buffer_load_dwordx4 v%d, s[%d:%d], s%d offen lds" % (vHS, sX, sX + 3, sH))
            a("s_mov_b32 exec_hi, -1")
    def wo(n0, n1):
        for nn in range(n0, n1):
            a("s_lshl_b32 s%d, s%d, 12\ns_add_u32 s%d, s%d, %d" % (sT0, sLW, sT0, sT0, nn * 16384))
            a("s_lshl_b32 s%d, s%d, 10\ns_add_u32 m0, s%d, %d" % (sT1, sLW, sT1, WO_BASE + nn * 4096))
            a("buffer_load_dwordx4 v%d, s[%d:%d], s%d offen lds" % (vWOS + (nn & 1), sWO, sWO + 3, sT0))
    if br == 0:
        a("s_cmp_eq_u32 s%d, 0\ns_cbranch_scc0 L_noinit" % sRT)
        a("s_lshl_b32 s%d, s%d, 2\ns_add_u32 s%d, s%d, s%d" % (sT0, sHG, sT0, sT0, sLW))
        a("s_lshl_b32 s%d, s%d, 10\ns_add_u32 s%d, s%d, 0x%x" % (sT1, sT0, sT1, sT1, WS_KV))
        a("v_lshl_add_u32 v16, v0, 4, s%d" % sT1)
        a("v_mov_b32 v20, 0\nv_mov_b32 v21, 0\nv_mov_b32 v22, 0\nv_mov_b32 v23, 0")
        a("buffer_store_dwordx4 v[20:23], v16, s[%d:%d], 0 offen sc1" % (sWS, sWS + 3))
        a("s_lshl_b32 s%d, s%d, 6\ns_add_u32 s%d, s%d, 0x%x" % (sT1, sT0, sT1, sT1, WS_Z))
        a("s_lshl_b32 s%d, s%d, 8\ns_add_u32 s%d, s%d, %d\ns_sub_u32 s%d, s%d, 64" % (sT2, sT0, sT2, sT2, WS_FLAG, sT2, sT2))
        a("v_lshl_add_u32 v17, v0, 4, s%d\nv_lshl_add_u32 v18, v0, 4, s%d" % (sT1, sT2))
        a("v_cmp_gt_u32 vcc, 4, v0\nv_cndmask_b32 v17, v18, v17, vcc")
        a("s_mov_b64 s[%d:%d], exec\ns_mov_b64 exec, 0xfffff" % (sSAVE, sSAVE + 1))
        a("buffer_store_dwordx4 v[20:23], v17, s[%d:%d], 0 offen sc1" % (sWS, sWS + 3))
        a("s_mov_b64 exec, s[%d:%d]" % (sSAVE, sSAVE + 1))
        a("L_noinit:")
    chunk(0); chunk(1); chunk(2)
    for c in range(8):
        if c == 0: w = 2 * n
        elif c <= 5: w = n
        elif c == 6: w = n + 8
        else: w = 19
        a("s_waitcnt vmcnt(%d)" % w)
        if c == 7:
            lab = a.lab("L_ini")
            a("s_cmp_eq_u32 s%d, 0\ns_cbranch_scc0 %s_x" % (sLW, lab))
            a("s_mov_b32 s%d, 0" % sCNT)
            a("%s:" % lab)
            a("v_cmp_eq_u32 vcc, 1, v24\ns_cmp_eq_u64 vcc, -1\ns_cbranch_scc1 %s_x" % lab)
            a("s_add_u32 s%d, s%d, 1\ns_cmp_gt_u32 s%d, 100000\ns_cbranch_scc1 %s_x" % (sCNT, sCNT, sCNT, lab))
            a("buffer_load_dword v24, v25, s[%d:%d], 0 offen sc1\ns_waitcnt vmcnt(0)\ns_branch %s" % (sDBG, sDBG + 3, lab))
            a("%s_x:" % lab)
        a("s_barrier")
        if c == 0 and br == 0:
            lab = a.lab("L_ifl")
            a("s_cmp_eq_u32 s%d, 0\ns_cbranch_scc0 %s\ns_cmp_eq_u32 s%d, 0\ns_cbranch_scc0 %s" % (sRT, lab, sLW, lab))
            a("s_lshl_b32 s%d, s%d, 2\ns_add_u32 s%d, s%d, 128\nv_mov_b32 v16, s%d\nv_mov_b32 v17, 1" % (sT0, sHG, sT0, sT0, sT0))
            a("s_mov_b64 s[%d:%d], exec\ns_mov_b64 exec, 1" % (sSAVE, sSAVE + 1))
            a("buffer_store_dword v17, v16, s[%d:%d], 0 offen sc1" % (sDBG, sDBG + 3))
            a("s_mov_b64 exec, s[%d:%d]" % (sSAVE, sSAVE + 1))
            a("%s:" % lab)
        if 1 <= c <= 5: chunk(c + 2)
        if c == 5:
            lab = a.lab("L_dbg")
            a("s_cmp_eq_u32 s%d, 0\ns_cbranch_scc0 %s" % (sLW, lab))
            a("buffer_load_dword v24, v25, s[%d:%d], 0 offen sc1" % (sDBG, sDBG + 3))
            a("%s:" % lab)
            wo(24, 32)
        if c == 6: wo(13, 24)
        if c == 7: wo(0, 2)
    a("s_barrier")
    wo(2, 13)
    a("s_waitcnt vmcnt(0)")
    a("s_barrier")
    lab = a.lab("L_fl")
    a("s_cmp_eq_u32 s%d, 0\ns_cbranch_scc0 L_p2wait" % sLW)
    a("s_lshl_b32 s%d, s%d, 8\ns_lshl_b32 s%d, s%d, 2\ns_add_u32 s%d, s%d, s%d\ns_add_u32 s%d, s%d, %d" % (sT0, sRT, sT1, sHG, sT0, sT0, sT1, sT0, sT0, WS_FLAG + br * 4096))
    a("v_mov_b32 v16, s%d\nv_mov_b32 v17, 1" % sT0)
    a("s_mov_b64 s[%d:%d], exec\ns_mov_b64 exec, 1" % (sSAVE, sSAVE + 1))
    a("buffer_store_dword v17, v16, s[%d:%d], 0 offen sc1" % (sWS, sWS + 3))
    a("s_mov_b64 exec, s[%d:%d]" % (sSAVE, sSAVE + 1))
    a("s_waitcnt vmcnt(0)")
    stamp(6)
    a("s_mov_b32 s%d, 0" % sCNT)
    if br:
        a("s_lshr_b32 s%d, s%d, 1\ns_lshl_b32 s%d, s%d, 8\ns_add_u32 s%d, s%d, %d" % (sT0, sRB, sT0, sT0, sT0, sT0, WS_FLAG + 4096))
        a("v_and_b32 v16, 7, v0\nv_lshl_add_u32 v16, v16, 2, s%d" % sT0)
        a("%s:" % lab)
        a("buffer_load_dword v17, v16, s[%d:%d], 0 offen sc1\ns_waitcnt vmcnt(0)" % (sWS, sWS + 3))
        a("v_cmp_eq_u32 vcc, 1, v17")
    else:
        a("v_lshrrev_b32 v16, 3, v0\nv_lshlrev_b32 v16, 8, v16\nv_and_b32 v17, 7, v0\nv_lshl_add_u32 v16, v17, 2, v16")
        if WS_FLAG: a("v_add_u32 v16, %d, v16" % WS_FLAG)
        a("%s:" % lab)
        a("buffer_load_dword v17, v16, s[%d:%d], 0 offen sc1\nbuffer_load_dword v18, v16, s[%d:%d], 0 offen offset:2048 sc1\ns_waitcnt vmcnt(0)" % (sWS, sWS + 3, sWS, sWS + 3))
        a("v_and_b32 v17, v17, v18\nv_cmp_eq_u32 vcc, 1, v17")
    a("s_cmp_eq_u64 vcc, -1\ns_cbranch_scc1 L_p2wait")
    a("s_add_u32 s%d, s%d, 1\ns_cmp_gt_u32 s%d, 100000\ns_cbranch_scc1 L_p2wait" % (sCNT, sCNT, sCNT))
    if OPT["sleep"]: a("s_sleep %d" % OPT["sleep"])
    a("s_branch %s" % lab)

a("s_cmp_eq_u32 s%d, 0\ns_cbranch_scc0 L_loaderB" % sBR)
loader(0)
a("L_loaderB:")
loader(1)

a("L_p2wait:")
vA2 = 112
vOP2, vOUT, vRED = 120, 121, 122
aOP, aWO = 0, 32
vACC = 8
a("v_and_b32 v1, 15, v0\nv_lshrrev_b32 v2, 4, v0")
a("s_and_b32 s%d, s%d, 3\ns_lshr_b32 s%d, s%d, 2" % (sT0, sWAVE, sT1, sWAVE))
a("s_lshl_b32 s%d, s%d, 2\ns_add_u32 s%d, s%d, s%d\ns_lshl_b32 s%d, s%d, 14" % (sT2, sRB, sT2, sT2, sT0, sT2, sT2))
a("s_lshl_b32 s%d, s%d, 13\ns_add_u32 s%d, s%d, s%d\ns_lshl_b32 s%d, s%d, 21\ns_add_u32 s%d, s%d, s%d\ns_add_u32 s%d, s%d, 0x%x" % (sT3, sT1, sT2, sT2, sT3, sT3, sBR, sT2, sT2, sT3, sT2, sT2, WS_OP))
a("v_lshl_add_u32 v%d, v0, 4, s%d" % (vOP2, sT2))
a("v_bfe_u32 v3, v0, 2, 2\nv_and_b32 v4, 3, v0\nv_and_b32 v5, 1, v2")
a("v_lshl_or_b32 v6, v5, 2, v3\nv_lshlrev_b32 v6, 5, v6\nv_lshl_add_u32 v6, v4, 3, v6")
a("s_cmp_eq_u32 s%d, 0\ns_cbranch_scc1 L_rowA" % sBR)
a("v_lshrrev_b32 v7, 1, v2\nv_lshlrev_b32 v7, 3, v7\nv_lshl_add_u32 v7, v5, 4, v7\nv_add_u32 v7, v7, v3\ns_branch L_rowX")
a("L_rowA:\nv_lshl_add_u32 v7, v2, 2, v3\nL_rowX:")
a("v_lshl_add_u32 v6, v7, 8, v6")
a("s_lshl_b32 s%d, s%d, 16\ns_add_u32 s%d, s%d, %d\nv_add_u32 v6, s%d, v6" % (sT2, sT1, sT2, sT2, WO_BASE, sT2))
for c8 in range(8): a("v_xor_b32 v%d, %d, v6" % (vA2 + c8, c8 << 5))
a("s_lshl_b32 s%d, s%d, 6\ns_lshr_b32 s%d, s%d, 1\ns_lshl_b32 s%d, s%d, 5\ns_add_u32 s%d, s%d, s%d\ns_and_b32 s%d, s%d, 1\ns_add_u32 s%d, s%d, s%d" % (sT2, sRB, sT3, sT0, sT3, sT3, sT2, sT2, sT3, sT3, sT0, sT2, sT2, sT3))
a("s_lshl_b32 s%d, s%d, 11\ns_lshl_b32 s%d, s%d, 10\ns_add_u32 s%d, s%d, s%d\ns_lshl_b32 s%d, s%d, 8\ns_add_u32 s%d, s%d, s%d\ns_lshl_b32 s%d, s%d, 7\ns_add_u32 s%d, s%d, s%d" % (sT2, sT2, sT3, sBR, sT2, sT2, sT3, sT3, sCT, sT2, sT2, sT3, sT3, sT1, sT2, sT2, sT3))
a("v_lshlrev_b32 v3, 12, v1\nv_and_b32 v4, 1, v2\nv_lshl_add_u32 v3, v4, 5, v3\nv_lshrrev_b32 v4, 1, v2\nv_lshl_add_u32 v3, v4, 4, v3\nv_add_u32 v%d, s%d, v3" % (vOUT, sT2))
a("s_lshl_b32 s%d, s%d, 12\ns_add_u32 s%d, s%d, %d\nv_lshl_add_u32 v%d, v0, 4, s%d" % (sT2, sWAVE, sT2, sT2, WO_BASE, vRED, sT2))
a("v_xor_b32 v%d, 0x4000, v%d" % (vRED + 1, vRED))
a("s_movk_i32 s%d, 0x1000" % sT5)
a("s_barrier")
stamp(7)
for jj in range(8):
    a("buffer_load_dwordx4 %s, v%d, s[%d:%d], %s offen offset:%d sc1" % (ar(aOP + 4 * jj, 4), vOP2, sWS, sWS + 3, "0" if jj < 4 else "s%d" % sT5, (jj & 3) * 1024))
a("s_cmp_eq_u32 s%d, 0\ns_cbranch_scc1 L_p2A" % sBR)

def wo_reads(jj, rdstep):
    out = []
    for c8 in range(8):
        for rd in range(2):
            out.append("ds_read_b64_tr_b16 %s, v%d offset:%d" % (ar(aWO + 32 * (jj & 1) + 4 * c8 + 2 * rd, 2), vA2 + c8, jj * 8192 + rd * rdstep))
    return out

rds = wo_reads(0, 1024)
for x in rds: a(x)
for jj in range(8):
    nxt = wo_reads(jj + 1, 1024) if jj < 7 else []
    a("s_waitcnt vmcnt(%d)" % (7 - jj))
    for c8 in range(8):
        a("s_waitcnt lgkmcnt(%d)" % (14 if jj < 7 else 14 - 2 * c8))
        a("v_mfma_f32_16x16x32_bf16 %s, %s, %s, %s" % (vr(vACC + 4 * c8, 4), ar(aWO + 32 * (jj & 1) + 4 * c8, 4), ar(aOP + 4 * jj, 4), "0" if jj == 0 else vr(vACC + 4 * c8, 4)))
        for x in nxt[2 * c8:2 * c8 + 2]: a(x)
a("s_branch L_p2red")

a("L_p2A:")
vKL = 124
a("s_lshl_b32 s%d, s%d, 12\ns_add_u32 s%d, s%d, 0x%x\nv_lshl_add_u32 v3, v0, 2, s%d" % (sT2, sWAVE, sT2, sT2, WS_KV, sT2))
for i in range(16):
    a("buffer_load_dword v%d, v3, s[%d:%d], 0 offen offset:%d sc1" % (vKL + i, sWS, sWS + 3, i * 256))
a("s_lshl_b32 s%d, s%d, 8\ns_add_u32 s%d, s%d, 0x%x" % (sT2, sWAVE, sT2, sT2, WS_Z))
a("v_and_b32 v4, 1, v2\nv_lshlrev_b32 v5, 6, v4\nv_lshrrev_b32 v6, 1, v2\nv_lshl_add_u32 v5, v6, 5, v5\nv_add_u32 v5, s%d, v5" % sT2)
for j2 in range(2):
    for hf in range(2):
        a("buffer_load_dwordx4 %s, v5, s[%d:%d], 0 offen offset:%d sc1" % (vr(140 + 8 * j2 + 4 * hf, 4), sWS, sWS + 3, j2 * 128 + hf * 16))
vM0, vMZ = 156, 157
a("v_cmp_eq_u32 vcc, 0, v4\nv_cndmask_b32_e64 v%d, 0, -1, vcc" % vM0)
a("v_lshrrev_b32 v6, 3, v1\nv_cmp_eq_u32 vcc, v6, v4\nv_cndmask_b32_e64 v%d, 0, -1, vcc" % vMZ)
a("s_lshl_b32 s%d, s%d, 11\nv_lshl_add_u32 v7, v0, 4, s%d" % (sT2, sWAVE, sT2))
for x in wo_reads(0, 4096): a(x)
a("s_waitcnt vmcnt(0)")
for j2 in range(2):
    b = vKL + 8 * j2
    d = 40 + 8 * j2
    a("v_cvt_pk_bf16_f32 v%d, v%d, v%d\nv_cvt_pk_bf16_f32 v%d, v%d, v%d" % (d, b, b + 1, d + 1, b + 2, b + 3))
    a("v_cvt_pk_bf16_f32 v%d, v%d, v%d\nv_cvt_pk_bf16_f32 v%d, v%d, v%d" % (d + 2, b + 4, b + 5, d + 3, b + 6, b + 7))
    z = 140 + 8 * j2
    for i in range(4): a("v_cvt_pk_bf16_f32 v%d, v%d, v%d" % (d + 4 + i, z + 2 * i, z + 2 * i + 1))
    a("v_permlane16_swap_b32 v%d, v%d\nv_permlane16_swap_b32 v%d, v%d" % (d, d + 2, d + 1, d + 3))
    for i in range(4): a("v_and_b32 v%d, v%d, v%d" % (d + 4 + i, d + 4 + i, vMZ))
    a("ds_write_b128 v7, %s offset:%d" % (vr(d, 4), LDS_K + j2 * 1024))
    a("ds_write_b128 v7, %s offset:%d" % (vr(d + 4, 4), LDS_Z + j2 * 1024))
a("s_waitcnt lgkmcnt(0)")
a("s_barrier")
stamp(8)
a("s_lshr_b32 s%d, s%d, 2\ns_lshl_b32 s%d, s%d, 13\nv_lshl_add_u32 v7, v0, 4, s%d" % (sT2, sWAVE, sT2, sT2, sT2))
a("s_mov_b32 s%d, 0x%x" % (sC2, EPS))
vKF, vZF, vA0, vA1, vN0, vN1, vDN, vRV, vBOP = 40, 48, 56, 60, 64, 68, 72, 76, 80
def kz_reads(jj):
    return ["ds_read_b128 %s, v7 offset:%d" % (vr(vKF + 4 * (jj & 1), 4), LDS_K + jj * 1024),
            "ds_read_b128 %s, v7 offset:%d" % (vr(vZF + 4 * (jj & 1), 4), LDS_Z + jj * 1024)]
def ocalc(jj):
    kf, zf, bop = vKF + 4 * (jj & 1), vZF + 4 * (jj & 1), vBOP + 4 * (jj & 1)
    s = []
    for i in range(4): s.append("v_and_b32 v%d, v%d, v%d" % (vA0 + i, kf + i, vM0))
    s.append("v_mfma_f32_16x16x32_bf16 %s, %s, %s, 0" % (vr(vDN, 4), vr(zf, 4), ar(aOP + 4 * jj, 4)))
    for i in range(4): s.append("v_xor_b32 v%d, v%d, v%d" % (vA1 + i, kf + i, vA0 + i))
    s.append("v_mfma_f32_16x16x32_bf16 %s, %s, %s, 0" % (vr(vN0, 4), vr(vA0, 4), ar(aOP + 4 * jj, 4)))
    s.append("v_mfma_f32_16x16x32_bf16 %s, %s, %s, 0" % (vr(vN1, 4), vr(vA1, 4), ar(aOP + 4 * jj, 4)))
    s.append("v_add_f32 v%d, s%d, v%d" % (vRV, sC2, vDN))
    s.append("v_rcp_f32 v%d, v%d" % (vRV, vRV))
    s.append("v_mov_b32 v%d, v%d" % (vRV + 1, vRV))
    s.append("v_permlane32_swap_b32 v%d, v%d" % (vRV, vRV + 1))
    for r in range(4): s.append("v_mul_f32 v%d, v%d, v%d" % (vN0 + r, vN0 + r, vRV))
    for r in range(4): s.append("v_mul_f32 v%d, v%d, v%d" % (vN1 + r, vN1 + r, vRV + 1))
    s.append("v_cvt_pk_bf16_f32 v%d, v%d, v%d" % (bop, vN0, vN0 + 1))
    s.append("v_cvt_pk_bf16_f32 v%d, v%d, v%d" % (bop + 1, vN0 + 2, vN0 + 3))
    s.append("v_cvt_pk_bf16_f32 v%d, v%d, v%d" % (bop + 2, vN1, vN1 + 1))
    s.append("v_cvt_pk_bf16_f32 v%d, v%d, v%d" % (bop + 3, vN1 + 2, vN1 + 3))
    return s
for x in kz_reads(0) + kz_reads(1): a(x)
a("s_waitcnt lgkmcnt(0)")
for x in ocalc(0): a(x)
for jj in range(8):
    a("s_waitcnt lgkmcnt(0)")
    g = []
    nxt = (wo_reads(jj + 1, 4096) if jj < 7 else [])
    kz = kz_reads(jj + 2) if jj < 6 else []
    bop = vBOP + 4 * (jj & 1)
    mf = ["v_mfma_f32_16x16x32_bf16 %s, %s, %s, %s" % (vr(vACC + 4 * c8, 4), ar(aWO + 32 * (jj & 1) + 4 * c8, 4), vr(bop, 4), "0" if jj == 0 else vr(vACC + 4 * c8, 4)) for c8 in range(8)]
    oc = ocalc(jj + 1) if jj < 7 else []
    streams = [oc, mf, nxt + kz]
    for x in sched.interleave(streams, weights=[3, 1, 2]): a(x)

a("L_p2red:")
stamp(9)
a("s_barrier")
a("s_lshr_b32 s%d, s%d, 2" % (sT1, sWAVE))
a("s_cmp_eq_u32 s%d, 0\ns_cbranch_scc0 L_red1" % sT1)
def red(own, other):
    for i in range(4): a("ds_write_b128 v%d, %s offset:%d" % (vRED, vr(vACC + 4 * (other + i), 4), i * 1024))
    a("s_waitcnt lgkmcnt(0)")
    a("s_barrier")
    for i in range(4): a("ds_read_b128 %s, v%d offset:%d" % (vr(40 + 4 * i, 4), vRED + 1, i * 1024))
    for i in range(4):
        a("s_waitcnt lgkmcnt(%d)" % (3 - i))
        for r in range(4): a("v_add_f32 v%d, v%d, v%d" % (40 + 4 * i + r, 40 + 4 * i + r, vACC + 4 * (own + i) + r))
        a("v_cvt_pk_bf16_f32 v%d, v%d, v%d\nv_cvt_pk_bf16_f32 v%d, v%d, v%d" % (60 + 2 * i, 40 + 4 * i, 41 + 4 * i, 61 + 2 * i, 42 + 4 * i, 43 + 4 * i))
        if i & 1:
            b = 60 + 2 * (i - 1)
            a("v_permlane16_swap_b32 v%d, v%d\nv_permlane16_swap_b32 v%d, v%d" % (b, b + 2, b + 1, b + 3))
            a("buffer_store_dwordx4 %s, v%d, s[%d:%d], 0 offen offset:%d" % (vr(b, 4), vOUT, sOUT, sOUT + 3, (i >> 1) * 64))
red(0, 4)
a("s_branch L_fin")
a("L_red1:")
red(4, 0)
a("L_fin:")
if STAMPS:
    stamp(10)
    a("s_waitcnt vmcnt(0)")
    stamp(11)
    a("s_waitcnt lgkmcnt(0)")
    if STAMPS == 2:
        a("s_and_b32 s%d, s%d, 3\ns_cmp_eq_u32 s%d, 0\ns_cbranch_scc0 L_end" % (sT0, sWAVE, sT0))
        a("s_mov_b64 exec, 1")
        a("s_not_b32 s%d, s%d" % (sSTB, sSTB))
        for j in range(NSTAMP):
            a("v_mov_b32 v6, s%d\nv_mov_b32 v5, %d" % (sSTB + 2 * j, 4 * j))
            a("buffer_atomic_umax v6, v5, s[%d:%d], 0 offen sc1" % (sDBG, sDBG + 3))
        a("s_lshl_b32 s%d, s%d, 2\ns_add_u32 s%d, s%d, 48\nv_mov_b32 v5, s%d\nv_mov_b32 v6, s%d" % (sT0, sBR, sT0, sT0, sT0, sSTB + 22))
        a("buffer_atomic_umax v6, v5, s[%d:%d], 0 offen sc1" % (sDBG, sDBG + 3))
        a("s_branch L_end")
    a("s_and_b32 s%d, s%d, 3\ns_cmp_eq_u32 s%d, 0\ns_cbranch_scc0 L_end" % (sT0, sWAVE, sT0))
    a("s_lshr_b32 s%d, s%d, 2\ns_lshl_b32 s%d, s2, 1\ns_add_u32 s%d, s%d, s%d\ns_mul_i32 s%d, s%d, %d\ns_add_u32 s%d, s%d, 0x%x" % (sT0, sWAVE, sT1, sT0, sT0, sT1, sT0, sT0, NSTAMP * 8, sT0, sT0, WS_STAMP))
    a("v_mov_b32 v5, s%d" % sT0)
    for j in range(NSTAMP):
        a("v_mov_b32 v6, s%d\nv_mov_b32 v7, s%d" % (sSTB + 2 * j, sSTB + 2 * j + 1))
        a("buffer_store_dwordx2 v[6:7], v5, s[%d:%d], 0 offen offset:%d" % (sWS, sWS + 3, 8 * j))
a("L_end:\ns_endpgm")

body = a.finalize()
hdr = open("concat_heads__linear_attn_block__sliding_local_dilated__prompt.s.ref").read().split("; Override launch")[0]
txt = hdr + "; @launch grid=(256,1,1) block=(512,1,1) lds=%d\n" % LDS_BYTES
txt += '.amdgcn_target "amdgcn-amd-amdhsa--gfx950"\n.text\n.globl %s\n.p2align 8\n.type %s,@function\n%s:\n' % (KN, KN, KN)
txt += body
txt += ('.section .rodata,"a"\n.p2align 6\n.amdhsa_kernel %s\n  .amdhsa_next_free_vgpr 256\n  .amdhsa_next_free_sgpr 102\n'
        '  .amdhsa_accum_offset 160\n  .amdhsa_group_segment_fixed_size 0\n  .amdhsa_kernarg_size 72\n  .amdhsa_user_sgpr_count 2\n'
        '  .amdhsa_user_sgpr_kernarg_segment_ptr 1\n  .amdhsa_system_sgpr_workgroup_id_x 1\n  .amdhsa_float_denorm_mode_32 3\n.end_amdhsa_kernel\n') % KN
open(sys.argv[1], "w").write(txt)
print("instructions:", a.count)
```

```python
import sys
from isa import Asm, Ins
import sched

KN = "concat_heads__linear_attn_block__sliding_local_dilated__prompt_kernel"
OPT = dict(stamps=0, rot=1, stop=99, prio=0, sleep=2)
for x in sys.argv[2:]:
    k, v = x.split("="); OPT[k] = int(v)
STAMPS = OPT["stamps"]
ATOM = " sc1" if OPT.get("atomsc1", 1) else ""

WS_FLAG = 0x0
WS_KV = 0x4000
WS_Z = 0xC000
WS_OP = 0x100000
WS_STAMP = 128 << 20
WS_BYTES = 268435456
SLOT = 43008
WOFF = 18432
WO_BASE = 32768
LDS_K = 0
LDS_Z = 16384
LDS_BYTES = 163840
BIG = 0xf149f2ca
EPS = 0x358637bd
LOG2E = 0x3fb8aa3b
NEG_EPS_LOG2E = 0xb5c1a4b9
import struct
def f2u(f): return struct.unpack("<I", struct.pack("<f", f))[0]
import math
LOG2E = f2u(math.log2(math.e)); EPS = f2u(1e-6); BIG = f2u(-1e30)
NEG_EPS_LOG2E = f2u(-1e-6 * math.log2(math.e))
SCALE_C = f2u(0.25 * math.log2(math.e))

sX, sW, sWO, sOUT, sWS, sDBG = 20, 24, 28, 32, 36, 40
sBR, sRT, sHG, sWAVE, sRB, sCT, sLW, sROT = 44, 45, 46, 47, 48, 49, 50, 51
sT0, sT1, sT2, sT3, sT4, sT5 = 52, 53, 54, 55, 56, 57
sX0, sX1, sH, sW0, sW1, sW2, sKC = 58, 59, 60, 61, 62, 63, 64
sM, sCNT, sSAVE = 65, 66, 68
sC0, sC1, sC2, sC3 = 70, 71, 72, 73
sSTB = 76
NSTAMP = 12

a = Asm()

def stamp(i):
    if STAMPS:
        a("s_memrealtime s[%d:%d]" % (sSTB + 2 * i, sSTB + 2 * i + 1))

def stamp_wait():
    if STAMPS:
        a("s_waitcnt lgkmcnt(0)")

def srd(d, base, nbytes):
    a("s_mov_b32 s%d, s%d\ns_and_b32 s%d, s%d, 0xffff\ns_mov_b32 s%d, 0x%x\ns_mov_b32 s%d, 0x00020000" % (d, base, d + 1, base + 1, d + 2, nbytes, d + 3))

def vr(b, n=1):
    return "v%d" % b if n == 1 else "v[%d:%d]" % (b, b + n - 1)
def ar(b, n=1):
    return "a%d" % b if n == 1 else "a[%d:%d]" % (b, b + n - 1)

a("s_cmp_ge_u32 s2, 256\ns_cbranch_scc1 L_end")
if STAMPS:
    for i in range(2 * NSTAMP): a("s_mov_b32 s%d, 0" % (sSTB + i))
stamp(0)
a("s_and_b32 s%d, s2, 7" % sT0)
a("s_lshr_b32 s%d, s2, 3" % sT1)
a("s_lshr_b32 s%d, s%d, 2" % (sBR, sT0))
a("s_mul_i32 s%d, s%d, 24" % (sT2, sBR))
a("s_add_u32 s18, s0, s%d\ns_addc_u32 s19, s1, 0" % sT2)
a("s_load_dwordx4 s[4:7], s[18:19], 0")
a("s_load_dwordx2 s[8:9], s[18:19], 16")
a("s_load_dwordx4 s[12:15], s[0:1], 48")
a("s_load_dwordx2 s[16:17], s[0:1], 64")
a("v_lshrrev_b32 v1, 6, v0\nv_and_b32 v0, 63, v0")
a("s_and_b32 s%d, s%d, 1\ns_lshl_b32 s%d, s%d, 3\ns_and_b32 s%d, s%d, 7\ns_add_u32 s%d, s%d, s%d" % (sT2, sT0, sT2, sT2, sT3, sT1, sRT, sT2, sT3))
a("v_readfirstlane_b32 s%d, v1" % sWAVE)
a("s_lshr_b32 s%d, s%d, 1\ns_and_b32 s%d, s%d, 1\ns_lshl_b32 s%d, s%d, 2\ns_lshr_b32 s%d, s%d, 3\ns_add_u32 s%d, s%d, s%d" % (sT2, sT0, sT2, sT2, sT2, sT2, sT4, sT1, sHG, sT2, sT4))
a("s_and_b32 s%d, s%d, 3\ns_lshl_b32 s%d, s%d, 3\ns_lshr_b32 s%d, s%d, 2\ns_add_u32 s%d, s%d, s%d" % (sT2, sT0, sT2, sT2, sT5, sT1, sRB, sT2, sT5))
a("s_and_b32 s%d, s%d, 3" % (sCT, sT1))
if OPT["rot"] == 1:
    a("s_lshl_b32 s%d, s%d, 1\ns_add_u32 s%d, s%d, s%d\ns_and_b32 s%d, s%d, 7" % (sROT, sT4, sROT, sROT, sT3, sROT, sROT))
elif OPT["rot"] == 2:
    a("s_and_b32 s%d, s%d, 1\ns_lshl_b32 s%d, s%d, 2" % (sROT, sT3, sROT, sROT))
else:
    a("s_mov_b32 s%d, 0" % sROT)
a("s_and_b32 s%d, s%d, 3" % (sLW, sWAVE))
a("s_waitcnt lgkmcnt(0)")
stamp(1)
srd(sX, 4, 2048 * 1024)
srd(sW, 6, 512 * 3072)
srd(sWO, 8, 512 * 1024)
srd(sOUT, 12, 2048 * 2048)
srd(sDBG, 14, 256)
srd(sWS, 16, WS_BYTES)
a("s_cmp_ge_u32 s%d, 4\ns_cbranch_scc1 L_loader" % sWAVE)

vQ, vK, vKH, vV, vVH = 8, 40, 72, 76, 108
vXR = 112
vWR = 118
vB = 121
vBC, vBP, vBH0, vBH1, vMC = 122, 126, 130, 134, 138
vTMP = 140
aXF, aWF = 0, 36

a("v_and_b32 v1, 15, v0\nv_lshrrev_b32 v2, 4, v0")
a("v_lshrrev_b32 v3, 1, v1")
a("v_xor_b32 v4, v3, v2")
a("v_lshlrev_b32 v5, 7, v1\nv_lshl_add_u32 v5, v4, 4, v5")
for s_ in range(3):
    a("v_add_u32 v%d, %d, v5" % (vXR + 2 * s_, s_ * SLOT))
    a("v_xor_b32 v%d, 64, v%d" % (vXR + 2 * s_ + 1, vXR + 2 * s_))
a("v_bfe_u32 v3, v0, 2, 2\nv_and_b32 v4, 3, v0")
a("v_lshl_add_u32 v5, v2, 3, v3\nv_lshlrev_b32 v5, 7, v5")
a("v_lshrrev_b32 v6, 1, v3\nv_and_b32 v7, 1, v2\nv_lshl_or_b32 v6, v7, 1, v6")
a("v_xor_b32 v6, s%d, v6" % sWAVE)
a("v_lshl_add_u32 v5, v6, 5, v5\nv_lshl_add_u32 v5, v4, 3, v5")
for s_ in range(3):
    a("v_add_u32 v%d, %d, v5" % (vWR + s_, s_ * SLOT + WOFF))
a("s_cmp_eq_u32 s%d, 0\ns_cbranch_scc0 L_mainB" % sBR)

def main_loop(br):
    NT = 9 if br else 8
    lg = []
    def rd_x(step, t):
        c, st = step >> 1, step & 1
        s_ = c % 3
        a("ds_read_b128 %s, v%d offset:%d" % (ar(aXF + 4 * t, 4), vXR + 2 * s_ + st, t * 2048)); lg.append(("x", step, t))
    def rd_w(step, i):
        c, st = step >> 1, step & 1
        s_ = c % 3
        part, rd = i >> 1, i & 1
        a("ds_read_b64_tr_b16 %s, v%d offset:%d" % (ar(aWF + 12 * (step & 1) + 4 * part + 2 * rd, 2), vWR + s_, part * 8192 + st * 4096 + rd * 512)); lg.append(("w", step, i))
    def need(keys):
        last = -1
        for i, k in enumerate(lg):
            if k in keys: last = i
        if last >= 0:
            n = len(lg) - 1 - last
            a("s_waitcnt lgkmcnt(%d)" % min(n, 15))
            if n > 15: n = 15
            del lg[:len(lg) - n]
    a("s_barrier")
    stamp(2)
    for i in range(6): rd_w(0, i)
    for t in range(NT): rd_x(0, t)
    for step in range(16):
        st = step & 1
        last = step == 15
        pend = []
        if not last:
            pend = [("w", i) for i in range(6)]
        deferred = []
        for t in range(NT):
            keys = [("x", step, t)]
            if t == 0: keys += [("w", step, i) for i in range(6)]
            need(keys)
            wb = aWF + 12 * (step & 1)
            xf = ar(aXF + 4 * t, 4)
            def cop(acc, eps):
                if step == 0: return vr(vTMP, 4) if eps else "0"
                return vr(acc, 4)
            if t < 8:
                a("v_mfma_f32_16x16x32_bf16 %s, %s, %s, %s" % (vr(vQ + 4 * t, 4), ar(wb, 4), xf, cop(vQ + 4 * t, br == 0)))
                kacc, vacc = vK + 4 * t, vV + 4 * t
            else:
                kacc, vacc = vKH, vVH
            if br:
                a("v_mfma_f32_16x16x32_bf16 %s, %s, %s, %s" % (vr(kacc, 4), ar(wb + 4, 4), xf, cop(kacc, False)))
            else:
                a("v_mfma_f32_16x16x32_bf16 %s, %s, %s, %s" % (vr(kacc, 4), xf, ar(wb + 4, 4), cop(kacc, True)))
            a("v_mfma_f32_16x16x32_bf16 %s, %s, %s, %s" % (vr(vacc, 4), xf, ar(wb + 8, 4), cop(vacc, False)))
            if st == 1 and t <= 2:
                if not last: deferred.append(("x", t))
                if t == 2:
                    a("s_waitcnt lgkmcnt(0)"); del lg[:]
                    a("s_barrier")
                    pend = pend + deferred if not last else []
                    if not last:
                        k = 0
                        while k < 3 and pend:
                            kind, i = pend.pop(0); rd_w(step + 1, i) if kind == "w" else rd_x(step + 1, i); k += 1
                continue
            if last: continue
            npend = 2
            if st == 1:
                pend.append(("x", t))
                k = 0
                while k < 3 and pend:
                    kind, i = pend.pop(0); rd_w(step + 1, i) if kind == "w" else rd_x(step + 1, i); k += 1
            else:
                rd_x(step + 1, t)
                k = 0
                while k < npend and pend:
                    kind, i = pend.pop(0); rd_w(step + 1, i); k += 1
        while pend:
            kind, i = pend.pop(0); rd_w(step + 1, i) if kind == "w" else rd_x(step + 1, i)
    stamp(3)

def store_op(base0, npairs, first_pair=0):
    pass

def op_store_addr(vd):
    a("v_and_b32 v3, 1, v2\nv_lshlrev_b32 v3, 14, v3")
    a("v_lshrrev_b32 v4, 1, v2\nv_lshl_add_u32 v3, v4, 9, v3\nv_lshl_add_u32 v3, v1, 4, v3")
    a("s_lshl_b32 s%d, s%d, 17" % (sT0, sRT))
    a("s_lshl_b32 s%d, s%d, 11\ns_add_u32 s%d, s%d, s%d" % (sT1, sHG, sT0, sT0, sT1))
    a("s_lshr_b32 s%d, s%d, 1\ns_lshl_b32 s%d, s%d, 10\ns_add_u32 s%d, s%d, s%d" % (sT1, sWAVE, sT1, sT1, sT0, sT0, sT1))
    a("s_and_b32 s%d, s%d, 1\ns_lshl_b32 s%d, s%d, 8\ns_add_u32 s%d, s%d, s%d" % (sT1, sWAVE, sT1, sT1, sT0, sT0, sT1))
    a("s_lshl_b32 s%d, s%d, 21\ns_add_u32 s%d, s%d, s%d\ns_add_u32 s%d, s%d, 0x%x" % (sT1, sBR, sT0, sT0, sT1, sT0, sT0, WS_OP))
    a("v_add_u32 v%d, s%d, v3" % (vd, sT0))

vOPA = 7
vKVA = 6

a("L_mainA:")
a("v_mov_b32 v%d, 0x%x" % (vTMP, EPS))
for i in range(1, 4): a("v_mov_b32 v%d, v%d" % (vTMP + i, vTMP))
op_store_addr(vOPA)
a("s_lshl_b32 s%d, s%d, 2\ns_add_u32 s%d, s%d, s%d" % (sT0, sHG, sT0, sT0, sWAVE))
a("s_lshl_b32 s%d, s%d, 10\ns_add_u32 s%d, s%d, 0x%x" % (sT1, sT0, sT1, sT1, WS_KV))
a("v_lshl_add_u32 v%d, v0, 2, s%d" % (vKVA, sT1))
a("s_lshl_b32 s%d, s%d, 6\ns_add_u32 s%d, s%d, 0x%x" % (sT1, sT0, sT1, sT1, WS_Z))
a("v_lshl_add_u32 v5, v0, 2, s%d" % sT1)
a("s_mov_b32 s%d, 0x%x\ns_mov_b32 s%d, 0x%x\ns_mov_b32 s%d, 0x%x" % (sC0, LOG2E, sC1, NEG_EPS_LOG2E, sC2, EPS))
main_loop(0)

def phi_stream(r0, dst, t0, t1):
    s = []
    for i in range(4):
        s.append("v_fma_f32 v%d, v%d, s%d, v%d" % (t0 + i, r0 + i, sC0, 4))
    for i in range(4):
        s.append("v_exp_f32_e64 v%d, v%d clamp" % (t0 + i, t0 + i))
    for i in range(4):
        s.append("v_max_f32 v%d, s%d, v%d" % (r0 + i, sC2, r0 + i))
    for i in range(4):
        s.append("v_add_f32 v%d, v%d, v%d" % (r0 + i, r0 + i, t0 + i))
    s.append("v_cvt_pk_bf16_f32 v%d, v%d, v%d" % (dst, r0, r0 + 1))
    s.append("v_cvt_pk_bf16_f32 v%d, v%d, v%d" % (dst + 1, r0 + 2, r0 + 3))
    return s

a("v_mov_b32 v4, s%d" % sC1)
vKP, vVP, vQP = 112, 128, 144
ONES = 72
for i in range(4): a("v_mov_b32 v%d, 0x3f803f80" % (ONES + i))
TQ = [108, 72 + 0]
streams = []
tq = [160 - 0]
for t in range(0, 8, 2):
    s0 = phi_stream(vK + 4 * t, vKP + 2 * t, 108, None)
    s1 = phi_stream(vK + 4 * (t + 1), vKP + 2 * (t + 1), 144, None)
    sv = ["v_cvt_pk_bf16_f32 v%d, v%d, v%d" % (vVP + 2 * tt + i, vV + 4 * tt + 2 * i, vV + 4 * tt + 2 * i + 1) for tt in (t, t + 1) for i in range(2)]
    for x in sched.interleave([s0, s1, sv]): a(x)
    acc_kv, acc_z = 76, 80
    cop = lambda r: "0" if t == 0 else vr(r, 4)
    a("v_mfma_f32_16x16x32_bf16 %s, %s, %s, %s" % (vr(acc_kv, 4), vr(vKP + 2 * t, 4), vr(vVP + 2 * t, 4), cop(acc_kv)))
    a("v_mfma_f32_16x16x32_bf16 %s, %s, %s, %s" % (vr(acc_z, 4), vr(ONES, 4), vr(vKP + 2 * t, 4), cop(acc_z)))
stamp(4)
for r in range(4):
    a("buffer_atomic_add_f32 v%d, v%d, s[%d:%d], 0 offen offset:%d%s" % (76 + r, vKVA, sWS, sWS + 3, r * 256, ATOM))
a("s_mov_b64 s[%d:%d], exec\ns_mov_b64 exec, 0xffff" % (sSAVE, sSAVE + 1))
a("buffer_atomic_add_f32 v80, v5, s[%d:%d], 0 offen%s" % (sWS, sWS + 3, ATOM))
a("s_mov_b64 exec, s[%d:%d]" % (sSAVE, sSAVE + 1))
for t in range(0, 8, 2):
    s0 = phi_stream(vQ + 4 * t, vQP + 2 * t, 108, None)
    s1 = phi_stream(vQ + 4 * (t + 1), vQP + 2 * (t + 1), 84, None)
    for x in sched.interleave([s0, s1]): a(x)
    b = vQP + 2 * t
    a("v_permlane16_swap_b32 v%d, v%d\nv_permlane16_swap_b32 v%d, v%d" % (b, b + 2, b + 1, b + 3))
    a("s_mov_b32 s%d, %d" % (sT0, t * 16384))
    a("buffer_store_dwordx4 %s, v%d, s[%d:%d], s%d offen sc1" % (vr(b, 4), vOPA, sWS, sWS + 3, sT0))
stamp(5)
a("s_waitcnt vmcnt(0)")
a("s_barrier")
a("s_branch L_p2wait")

a("L_mainB:")
op_store_addr(vOPA)
a("v_lshlrev_b32 v3, 2, v2")
a("v_mov_b32 v6, 0x%x" % BIG)
for r in range(4):
    a("v_add_u32 v4, %d, v3" % r)
    a("v_sub_u32 v5, v1, v4")
    a("v_cmp_gt_u32 vcc, 8, v5")
    a("v_cndmask_b32_e64 v%d, v6, 0, vcc" % (vBC + r))
    if r % 2 == 0:
        a("v_cndmask_b32_e64 v%d, 0, -1, vcc\nv_and_b32 v%d, 0xffff, v%d" % (vMC + r // 2, vMC + r // 2, vMC + r // 2))
    else:
        a("v_cndmask_b32_e64 v5, 0, -1, vcc\nv_and_b32 v5, 0xffff0000, v5\nv_or_b32 v%d, v%d, v5" % (vMC + r // 2, vMC + r // 2))
    a("v_sub_u32 v5, v4, v1")
    a("v_cmp_le_i32 vcc, 9, v5")
    a("v_cndmask_b32_e64 v%d, v6, 0, vcc" % (vBP + r))
    a("v_cmp_le_i32 vcc, 1, v5\nv_cndmask_b32_e64 v%d, v6, 0, vcc" % (vBH0 + r))
    a("v_cmp_ge_u32 vcc, 7, v4\nv_cndmask_b32_e64 v%d, v6, v%d, vcc" % (vBH0 + r, vBH0 + r))
    a("v_mov_b32 v%d, v%d" % (vBH1 + r, vBP + r))
a("s_cmp_eq_u32 s%d, 0\ns_cbranch_scc0 L_nomask" % sRT)
for r in range(4):
    a("v_mov_b32 v%d, v6\nv_mov_b32 v%d, v6" % (vBH0 + r, vBH1 + r))
a("L_nomask:")
a("s_mov_b32 s%d, 0x%x" % (sC0, SCALE_C))
main_loop(1)
vVP = 140; vKPb = 76; vQPb = 94
def VP(p, u): return vVP + 10 * p + 2 * (u + 1)
def KP(t): return vKPb + 2 * t
def QP(t): return vQPb + 2 * t
pk = lambda d, s: ["v_cvt_pk_bf16_f32 v%d, v%d, v%d" % (d, s, s + 1), "v_cvt_pk_bf16_f32 v%d, v%d, v%d" % (d + 1, s + 2, s + 3)]
for t in range(8):
    for x in pk(VP(t & 1, t >> 1), vV + 4 * t): a(x)
for x in pk(VP(0, -1), vVH): a(x)
a("v_mov_b32 v%d, v%d\nv_mov_b32 v%d, v%d" % (VP(1, -1), VP(0, -1), VP(1, -1) + 1, VP(0, -1) + 1))
for t in range(8):
    for x in pk(KP(t), vK + 4 * t): a(x)
for x in pk(KP(8), vKH): a(x)
for t in range(8):
    for x in pk(QP(t), vQ + 4 * t): a(x)
ONESB = 110
ONESB = 112
for i in range(4): a("v_mov_b32 v%d, 0x3f803f80" % (ONESB + i))
def unit(t, T):
    p, u = t & 1, t >> 1
    SP, SC, SM, m0, m1 = T, T + 4, T + 8, T + 12, T + 13
    tp = 8 if u == 0 else t - 2
    bias = (vBH0 if p == 0 else vBH1) if u == 0 else vBP
    s = []
    s.append("v_mfma_f32_16x16x16_bf16 %s, %s, %s, %s" % (vr(SP, 4), vr(KP(tp), 2), vr(QP(t), 2), vr(bias, 4)))
    s.append("v_mfma_f32_16x16x16_bf16 %s, %s, %s, %s" % (vr(SC, 4), vr(KP(t), 2), vr(QP(t), 2), vr(vBC, 4)))
    for r in range(4): s.append("v_max_f32 v%d, v%d, v%d" % (SC + r, SC + r, SP + r))
    s.append("v_max3_f32 v%d, v%d, v%d, v%d" % (m0, SC, SC + 1, SC + 2))
    s.append("v_max_f32 v%d, v%d, v%d" % (m0, m0, SC + 3))
    s.append("v_mov_b32 v%d, v%d" % (m1, m0))
    s.append("v_permlane16_swap_b32 v%d, v%d" % (m0, m1))
    s.append("v_max_f32 v%d, v%d, v%d" % (m0, m0, m1))
    s.append("v_mov_b32 v%d, v%d" % (m1, m0))
    s.append("v_permlane32_swap_b32 v%d, v%d" % (m0, m1))
    s.append("v_max_f32 v%d, v%d, v%d" % (m0, m0, m1))
    s.append("v_mul_f32 v%d, s%d, v%d" % (m0, sC0, m0))
    for r in range(4): s.append("v_fma_f32 v%d, v%d, s%d, -v%d" % (SC + r, SC + r, sC0, m0))
    for r in range(4): s.append("v_exp_f32 v%d, v%d" % (SC + r, SC + r))
    s.append("v_cvt_pk_bf16_f32 v%d, v%d, v%d" % (SC, SC, SC + 1))
    s.append("v_cvt_pk_bf16_f32 v%d, v%d, v%d" % (SC + 1, SC + 2, SC + 3))
    s.append("v_and_b32 v%d, v%d, v%d" % (SP + 2, SC, vMC))
    s.append("v_and_b32 v%d, v%d, v%d" % (SP + 3, SC + 1, vMC + 1))
    s.append("v_xor_b32 v%d, v%d, v%d" % (SP, SC, SP + 2))
    s.append("v_xor_b32 v%d, v%d, v%d" % (SP + 1, SC + 1, SP + 3))
    s.append("v_mfma_f32_16x16x32_bf16 %s, %s, %s, 0" % (vr(SM, 4), vr(ONESB, 4), vr(SP, 4)))
    s.append("v_mfma_f32_16x16x32_bf16 %s, %s, %s, 0" % (vr(SC, 4), vr(VP(p, u - 1), 4), vr(SP, 4)))
    s.append("v_rcp_f32 v%d, v%d" % (m0, SM))
    for r in range(4): s.append("v_mul_f32 v%d, v%d, v%d" % (SC + r, SC + r, m0))
    s.append("v_cvt_pk_bf16_f32 v%d, v%d, v%d" % (QP(t), SC, SC + 1))
    s.append("v_cvt_pk_bf16_f32 v%d, v%d, v%d" % (QP(t) + 1, SC + 2, SC + 3))
    return s
for grp in range(2):
    ss = [unit(4 * grp + i, 8 + 16 * i) for i in range(4)]
    for x in sched.interleave(ss): a(x)
    for u in (2 * grp, 2 * grp + 1):
        b = QP(2 * u)
        a("v_permlane16_swap_b32 v%d, v%d\nv_permlane16_swap_b32 v%d, v%d" % (b, b + 2, b + 1, b + 3))
        a("s_mov_b32 s%d, %d" % (sT0, 2 * u * 16384))
        a("buffer_store_dwordx4 %s, v%d, s[%d:%d], s%d offen sc1" % (vr(b, 4), vOPA, sWS, sWS + 3, sT0))
stamp(5)
a("s_waitcnt vmcnt(0)")
a("s_barrier")
a("s_branch L_p2wait")

a("L_loader:")
a("v_lshrrev_b32 v1, 3, v0\nv_and_b32 v2, 7, v0")
vXS, vHS, vWS_, vWOS = 8, 10, 12, 14
a("v_lshrrev_b32 v3, 1, v1")
for mh in range(2):
    a("v_or_b32 v4, %d, v3\nv_xor_b32 v4, v4, v2\nv_lshlrev_b32 v4, 4, v4" % (4 * mh))
    a("v_lshl_add_u32 v4, v1, 11, v4\nv_add_u32 v%d, %d, v4" % (vXS + mh, mh * 16 * 1024))
a("s_lshl_b32 s%d, s%d, 2\nv_add_u32 v4, s%d, v1" % (sT0, sLW, sT0))
a("v_and_b32 v5, 7, v4\nv_lshlrev_b32 v5, 1, v5\nv_lshrrev_b32 v6, 3, v4\nv_add_u32 v5, v5, v6")
a("s_lshl_b32 s%d, s%d, 7\ns_sub_u32 s%d, s%d, 16\nv_add_u32 v5, s%d, v5\nv_max_i32 v5, 0, v5" % (sT0, sRT, sT0, sT0, sT0))
a("v_lshrrev_b32 v6, 1, v4\nv_and_b32 v6, 7, v6\nv_xor_b32 v6, v6, v2\nv_lshlrev_b32 v6, 4, v6\nv_lshl_add_u32 v%d, v5, 10, v6" % vHS)
a("v_and_b32 v4, 1, v3\nv_lshrrev_b32 v5, 1, v2\nv_and_b32 v6, 1, v2")
a("v_mul_u32_u24 v7, 3072, v1")
for kp in range(2):
    a("v_or_b32 v16, %d, v4\nv_xor_b32 v16, v16, v5\nv_lshlrev_b32 v16, 5, v16\nv_lshl_add_u32 v16, v6, 4, v16" % (2 * kp))
    a("v_add_u32 v16, v16, v7\nv_add_u32 v%d, %d, v16" % (vWS_ + kp, kp * 8 * 3072))
a("v_lshrrev_b32 v3, 4, v0\nv_bfe_u32 v4, v0, 1, 3\nv_and_b32 v5, 1, v0")
a("s_lshl_b32 s%d, s%d, 8" % (sT0, sCT))
a("s_and_b32 s%d, s%d, 1" % (sT1, sLW))
for b in range(2):
    a("s_cmp_eq_u32 s%d, 0\ns_cselect_b32 s%d, s%d, %d\ns_lshl_b32 s%d, s%d, 2" % (sBR, sT2, sT1, b, sT2, sT2))
    a("v_or_b32 v6, s%d, v3\nv_xor_b32 v6, v6, v4\nv_lshlrev_b32 v6, 5, v6\nv_lshl_add_u32 v6, v5, 4, v6" % sT2)
    a("v_lshl_add_u32 v6, v3, 10, v6\nv_add_u32 v%d, s%d, v6" % (vWOS + b, sT0))

a("v_and_b32 v25, 7, v0\nv_lshlrev_b32 v25, 2, v25\nv_add_u32 v25, 128, v25\nv_mov_b32 v24, 0")
def dma(vaddr, srd_, soff, ldsreg_or_imm):
    a("s_mov_b32 m0, %s" % ldsreg_or_imm)
    a("buffer_load_dwordx4 v%d, s[%d:%d], s%d offen lds" % (vaddr, srd_, srd_ + 3, soff))

def loader(br):
    n = 11 if br else 10
    sLX, sLH, sLWb = 74, 75, 67
    a("s_lshl_b32 s%d, s%d, 12" % (sLX, sLW))
    a("s_lshl_b32 s%d, s%d, 9\ns_add_u32 s%d, s%d, 16384" % (sLH, sLW, sLH, sLH))
    a("s_lshl_b32 s%d, s%d, 11\ns_add_u32 s%d, s%d, %d" % (sLWb, sLW, sLWb, sLWb, WOFF))
    a("s_lshl_b32 s%d, s%d, 17\ns_lshl_b32 s%d, s%d, 15\ns_add_u32 s18, s%d, s%d" % (sT0, sRT, sT1, sLW, sT0, sT1))
    a("s_mul_i32 s%d, s%d, %d\ns_lshl_b32 s%d, s%d, 7\ns_add_u32 s19, s%d, s%d" % (sT0, sLW, 16 * 3072, sT1, sHG, sT0, sT1))
    def chunk(c):
        sl = (c % 3) * SLOT
        a("s_add_u32 s%d, s%d, %d\ns_and_b32 s%d, s%d, 7" % (sKC, sROT, c, sKC, sKC))
        a("s_lshl_b32 s%d, s%d, 7" % (sH, sKC))
        a("s_add_u32 s%d, s18, s%d\ns_add_u32 s%d, s%d, 1024" % (sX0, sH, sX1, sX0))
        a("s_mul_i32 s%d, s%d, %d\ns_add_u32 s%d, s19, s%d" % (sW0, sKC, 64 * 3072, sW0, sW0))
        a("s_add_u32 s%d, s%d, 1024\ns_add_u32 s%d, s%d, 2048" % (sW1, sW0, sW2, sW0))
        for part, sw in enumerate((sW0, sW1, sW2)):
            for kp in range(2):
                a("s_add_u32 m0, s%d, %d" % (sLWb, sl + part * 8192 + kp * 1024))
                a("buffer_load_dwordx4 v%d, s[%d:%d], s%d offen lds" % (vWS_ + kp, sW, sW + 3, sw))
        for pp, sx in enumerate((sX0, sX1)):
            for mh in range(2):
                a("s_add_u32 m0, s%d, %d" % (sLX, sl + pp * 2048 + mh * 1024))
                a("buffer_load_dwordx4 v%d, s[%d:%d], s%d offen lds" % (vXS + mh, sX, sX + 3, sx))
        if br:
            a("s_add_u32 m0, s%d, %d" % (sLH, sl))
            a("s_mov_b32 exec_hi, 0")
            a("buffer_load_dwordx4 v%d, s[%d:%d], s%d offen lds" % (vHS, sX, sX + 3, sH))
            a("s_mov_b32 exec_hi, -1")
    def wo(n0, n1):
        for nn in range(n0, n1):
            a("s_lshl_b32 s%d, s%d, 12\ns_add_u32 s%d, s%d, %d" % (sT0, sLW, sT0, sT0, nn * 16384))
            a("s_lshl_b32 s%d, s%d, 10\ns_add_u32 m0, s%d, %d" % (sT1, sLW, sT1, WO_BASE + nn * 4096))
            a("buffer_load_dwordx4 v%d, s[%d:%d], s%d offen lds" % (vWOS + (nn & 1), sWO, sWO + 3, sT0))
    if br == 0:
        a("s_cmp_eq_u32 s%d, 0\ns_cbranch_scc0 L_noinit" % sRT)
        a("s_lshl_b32 s%d, s%d, 2\ns_add_u32 s%d, s%d, s%d" % (sT0, sHG, sT0, sT0, sLW))
        a("s_lshl_b32 s%d, s%d, 10\ns_add_u32 s%d, s%d, 0x%x" % (sT1, sT0, sT1, sT1, WS_KV))
        a("v_lshl_add_u32 v16, v0, 4, s%d" % sT1)
        a("v_mov_b32 v20, 0\nv_mov_b32 v21, 0\nv_mov_b32 v22, 0\nv_mov_b32 v23, 0")
        a("buffer_store_dwordx4 v[20:23], v16, s[%d:%d], 0 offen sc1" % (sWS, sWS + 3))
        a("s_lshl_b32 s%d, s%d, 6\ns_add_u32 s%d, s%d, 0x%x" % (sT1, sT0, sT1, sT1, WS_Z))
        a("s_lshl_b32 s%d, s%d, 8\ns_add_u32 s%d, s%d, %d\ns_sub_u32 s%d, s%d, 64" % (sT2, sT0, sT2, sT2, WS_FLAG, sT2, sT2))
        a("v_lshl_add_u32 v17, v0, 4, s%d\nv_lshl_add_u32 v18, v0, 4, s%d" % (sT1, sT2))
        a("v_cmp_gt_u32 vcc, 4, v0\nv_cndmask_b32 v17, v18, v17, vcc")
        a("s_mov_b64 s[%d:%d], exec\ns_mov_b64 exec, 0xfffff" % (sSAVE, sSAVE + 1))
        a("buffer_store_dwordx4 v[20:23], v17, s[%d:%d], 0 offen sc1" % (sWS, sWS + 3))
        a("s_mov_b64 exec, s[%d:%d]" % (sSAVE, sSAVE + 1))
        a("L_noinit:")
    chunk(0); chunk(1); chunk(2)
    for c in range(8):
        if c == 0: w = 2 * n
        elif c <= 5: w = n
        elif c == 6: w = n + 8
        else: w = 19
        a("s_waitcnt vmcnt(%d)" % w)
        if c == 7:
            lab = a.lab("L_ini")
            a("s_cmp_eq_u32 s%d, 0\ns_cbranch_scc0 %s_x" % (sLW, lab))
            a("s_mov_b32 s%d, 0" % sCNT)
            a("%s:" % lab)
            a("v_cmp_eq_u32 vcc, 1, v24\ns_cmp_eq_u64 vcc, -1\ns_cbranch_scc1 %s_x" % lab)
            a("s_add_u32 s%d, s%d, 1\ns_cmp_gt_u32 s%d, 100000\ns_cbranch_scc1 %s_x" % (sCNT, sCNT, sCNT, lab))
            a("buffer_load_dword v24, v25, s[%d:%d], 0 offen sc1\ns_waitcnt vmcnt(0)\ns_branch %s" % (sDBG, sDBG + 3, lab))
            a("%s_x:" % lab)
        a("s_barrier")
        if c == 0 and br == 0:
            lab = a.lab("L_ifl")
            a("s_cmp_eq_u32 s%d, 0\ns_cbranch_scc0 %s\ns_cmp_eq_u32 s%d, 0\ns_cbranch_scc0 %s" % (sRT, lab, sLW, lab))
            a("s_lshl_b32 s%d, s%d, 2\ns_add_u32 s%d, s%d, 128\nv_mov_b32 v16, s%d\nv_mov_b32 v17, 1" % (sT0, sHG, sT0, sT0, sT0))
            a("s_mov_b64 s[%d:%d], exec\ns_mov_b64 exec, 1" % (sSAVE, sSAVE + 1))
            a("buffer_store_dword v17, v16, s[%d:%d], 0 offen sc1" % (sDBG, sDBG + 3))
            a("s_mov_b64 exec, s[%d:%d]" % (sSAVE, sSAVE + 1))
            a("%s:" % lab)
        if 1 <= c <= 5: chunk(c + 2)
        if c == 5:
            lab = a.lab("L_dbg")
            a("s_cmp_eq_u32 s%d, 0\ns_cbranch_scc0 %s" % (sLW, lab))
            a("buffer_load_dword v24, v25, s[%d:%d], 0 offen sc1" % (sDBG, sDBG + 3))
            a("%s:" % lab)
            wo(24, 32)
        if c == 6: wo(13, 24)
        if c == 7: wo(0, 2)
    a("s_barrier")
    wo(2, 13)
    a("s_waitcnt vmcnt(0)")
    a("s_barrier")
    lab = a.lab("L_fl")
    a("s_cmp_eq_u32 s%d, 0\ns_cbranch_scc0 L_p2wait" % sLW)
    a("s_lshl_b32 s%d, s%d, 8\ns_lshl_b32 s%d, s%d, 2\ns_add_u32 s%d, s%d, s%d\ns_add_u32 s%d, s%d, %d" % (sT0, sRT, sT1, sHG, sT0, sT0, sT1, sT0, sT0, WS_FLAG + br * 4096))
    a("v_mov_b32 v16, s%d\nv_mov_b32 v17, 1" % sT0)
    a("s_mov_b64 s[%d:%d], exec\ns_mov_b64 exec, 1" % (sSAVE, sSAVE + 1))
    a("buffer_store_dword v17, v16, s[%d:%d], 0 offen sc1" % (sWS, sWS + 3))
    a("s_mov_b64 exec, s[%d:%d]" % (sSAVE, sSAVE + 1))
    a("s_waitcnt vmcnt(0)")
    stamp(6)
    a("s_mov_b32 s%d, 0" % sCNT)
    if br:
        a("s_lshr_b32 s%d, s%d, 1\ns_lshl_b32 s%d, s%d, 8\ns_add_u32 s%d, s%d, %d" % (sT0, sRB, sT0, sT0, sT0, sT0, WS_FLAG + 4096))
        a("v_and_b32 v16, 7, v0\nv_lshl_add_u32 v16, v16, 2, s%d" % sT0)
        a("%s:" % lab)
        a("buffer_load_dword v17, v16, s[%d:%d], 0 offen sc1\ns_waitcnt vmcnt(0)" % (sWS, sWS + 3))
        a("v_cmp_eq_u32 vcc, 1, v17")
    else:
        a("v_lshrrev_b32 v16, 3, v0\nv_lshlrev_b32 v16, 8, v16\nv_and_b32 v17, 7, v0\nv_lshl_add_u32 v16, v17, 2, v16")
        if WS_FLAG: a("v_add_u32 v16, %d, v16" % WS_FLAG)
        a("%s:" % lab)
        a("buffer_load_dword v17, v16, s[%d:%d], 0 offen sc1\nbuffer_load_dword v18, v16, s[%d:%d], 0 offen offset:2048 sc1\ns_waitcnt vmcnt(0)" % (sWS, sWS + 3, sWS, sWS + 3))
        a("v_and_b32 v17, v17, v18\nv_cmp_eq_u32 vcc, 1, v17")
    a("s_cmp_eq_u64 vcc, -1\ns_cbranch_scc1 L_p2wait")
    a("s_add_u32 s%d, s%d, 1\ns_cmp_gt_u32 s%d, 100000\ns_cbranch_scc1 L_p2wait" % (sCNT, sCNT, sCNT))
    if OPT["sleep"]: a("s_sleep %d" % OPT["sleep"])
    a("s_branch %s" % lab)

a("s_cmp_eq_u32 s%d, 0\ns_cbranch_scc0 L_loaderB" % sBR)
loader(0)
a("L_loaderB:")
loader(1)

a("L_p2wait:")
vA2 = 112
vOP2, vOUT, vRED = 120, 121, 122
aOP, aWO = 0, 32
vACC = 8
a("v_and_b32 v1, 15, v0\nv_lshrrev_b32 v2, 4, v0")
a("s_and_b32 s%d, s%d, 3\ns_lshr_b32 s%d, s%d, 2" % (sT0, sWAVE, sT1, sWAVE))
a("s_lshl_b32 s%d, s%d, 2\ns_add_u32 s%d, s%d, s%d\ns_lshl_b32 s%d, s%d, 14" % (sT2, sRB, sT2, sT2, sT0, sT2, sT2))
a("s_lshl_b32 s%d, s%d, 13\ns_add_u32 s%d, s%d, s%d\ns_lshl_b32 s%d, s%d, 21\ns_add_u32 s%d, s%d, s%d\ns_add_u32 s%d, s%d, 0x%x" % (sT3, sT1, sT2, sT2, sT3, sT3, sBR, sT2, sT2, sT3, sT2, sT2, WS_OP))
a("v_lshl_add_u32 v%d, v0, 4, s%d" % (vOP2, sT2))
a("v_bfe_u32 v3, v0, 2, 2\nv_and_b32 v4, 3, v0\nv_and_b32 v5, 1, v2")
a("v_lshl_or_b32 v6, v5, 2, v3\nv_lshlrev_b32 v6, 5, v6\nv_lshl_add_u32 v6, v4, 3, v6")
a("s_cmp_eq_u32 s%d, 0\ns_cbranch_scc1 L_rowA" % sBR)
a("v_lshrrev_b32 v7, 1, v2\nv_lshlrev_b32 v7, 3, v7\nv_lshl_add_u32 v7, v5, 4, v7\nv_add_u32 v7, v7, v3\ns_branch L_rowX")
a("L_rowA:\nv_lshl_add_u32 v7, v2, 2, v3\nL_rowX:")
a("v_lshl_add_u32 v6, v7, 8, v6")
a("s_lshl_b32 s%d, s%d, 16\ns_add_u32 s%d, s%d, %d\nv_add_u32 v6, s%d, v6" % (sT2, sT1, sT2, sT2, WO_BASE, sT2))
for c8 in range(8): a("v_xor_b32 v%d, %d, v6" % (vA2 + c8, c8 << 5))
a("s_lshl_b32 s%d, s%d, 6\ns_lshr_b32 s%d, s%d, 1\ns_lshl_b32 s%d, s%d, 5\ns_add_u32 s%d, s%d, s%d\ns_and_b32 s%d, s%d, 1\ns_add_u32 s%d, s%d, s%d" % (sT2, sRB, sT3, sT0, sT3, sT3, sT2, sT2, sT3, sT3, sT0, sT2, sT2, sT3))
a("s_lshl_b32 s%d, s%d, 11\ns_lshl_b32 s%d, s%d, 10\ns_add_u32 s%d, s%d, s%d\ns_lshl_b32 s%d, s%d, 8\ns_add_u32 s%d, s%d, s%d\ns_lshl_b32 s%d, s%d, 7\ns_add_u32 s%d, s%d, s%d" % (sT2, sT2, sT3, sBR, sT2, sT2, sT3, sT3, sCT, sT2, sT2, sT3, sT3, sT1, sT2, sT2, sT3))
a("v_lshlrev_b32 v3, 12, v1\nv_and_b32 v4, 1, v2\nv_lshl_add_u32 v3, v4, 5, v3\nv_lshrrev_b32 v4, 1, v2\nv_lshl_add_u32 v3, v4, 4, v3\nv_add_u32 v%d, s%d, v3" % (vOUT, sT2))
a("s_lshl_b32 s%d, s%d, 12\ns_add_u32 s%d, s%d, %d\nv_lshl_add_u32 v%d, v0, 4, s%d" % (sT2, sWAVE, sT2, sT2, WO_BASE, vRED, sT2))
a("v_xor_b32 v%d, 0x4000, v%d" % (vRED + 1, vRED))
a("s_movk_i32 s%d, 0x1000" % sT5)
a("s_barrier")
stamp(7)
for jj in range(8):
    a("buffer_load_dwordx4 %s, v%d, s[%d:%d], %s offen offset:%d sc1" % (ar(aOP + 4 * jj, 4), vOP2, sWS, sWS + 3, "0" if jj < 4 else "s%d" % sT5, (jj & 3) * 1024))
a("s_cmp_eq_u32 s%d, 0\ns_cbranch_scc1 L_p2A" % sBR)

def wo_reads(jj, rdstep):
    out = []
    for c8 in range(8):
        for rd in range(2):
            out.append("ds_read_b64_tr_b16 %s, v%d offset:%d" % (ar(aWO + 32 * (jj & 1) + 4 * c8 + 2 * rd, 2), vA2 + c8, jj * 8192 + rd * rdstep))
    return out

rds = wo_reads(0, 1024)
for x in rds: a(x)
for jj in range(8):
    nxt = wo_reads(jj + 1, 1024) if jj < 7 else []
    a("s_waitcnt vmcnt(%d)" % (7 - jj))
    for c8 in range(8):
        a("s_waitcnt lgkmcnt(%d)" % (14 if jj < 7 else 14 - 2 * c8))
        a("v_mfma_f32_16x16x32_bf16 %s, %s, %s, %s" % (vr(vACC + 4 * c8, 4), ar(aWO + 32 * (jj & 1) + 4 * c8, 4), ar(aOP + 4 * jj, 4), "0" if jj == 0 else vr(vACC + 4 * c8, 4)))
        for x in nxt[2 * c8:2 * c8 + 2]: a(x)
a("s_branch L_p2red")

a("L_p2A:")
vKL = 124
a("s_lshl_b32 s%d, s%d, 12\ns_add_u32 s%d, s%d, 0x%x\nv_lshl_add_u32 v3, v0, 2, s%d" % (sT2, sWAVE, sT2, sT2, WS_KV, sT2))
for i in range(16):
    a("buffer_load_dword v%d, v3, s[%d:%d], 0 offen offset:%d sc1" % (vKL + i, sWS, sWS + 3, i * 256))
a("s_lshl_b32 s%d, s%d, 8\ns_add_u32 s%d, s%d, 0x%x" % (sT2, sWAVE, sT2, sT2, WS_Z))
a("v_and_b32 v4, 1, v2\nv_lshlrev_b32 v5, 6, v4\nv_lshrrev_b32 v6, 1, v2\nv_lshl_add_u32 v5, v6, 5, v5\nv_add_u32 v5, s%d, v5" % sT2)
for j2 in range(2):
    for hf in range(2):
        a("buffer_load_dwordx4 %s, v5, s[%d:%d], 0 offen offset:%d sc1" % (vr(140 + 8 * j2 + 4 * hf, 4), sWS, sWS + 3, j2 * 128 + hf * 16))
vM0, vMZ = 156, 157
a("v_cmp_eq_u32 vcc, 0, v4\nv_cndmask_b32_e64 v%d, 0, -1, vcc" % vM0)
a("v_lshrrev_b32 v6, 3, v1\nv_cmp_eq_u32 vcc, v6, v4\nv_cndmask_b32_e64 v%d, 0, -1, vcc" % vMZ)
a("s_lshl_b32 s%d, s%d, 11\nv_lshl_add_u32 v7, v0, 4, s%d" % (sT2, sWAVE, sT2))
for x in wo_reads(0, 4096): a(x)
a("s_waitcnt vmcnt(0)")
for j2 in range(2):
    b = vKL + 8 * j2
    d = 40 + 8 * j2
    a("v_cvt_pk_bf16_f32 v%d, v%d, v%d\nv_cvt_pk_bf16_f32 v%d, v%d, v%d" % (d, b, b + 1, d + 1, b + 2, b + 3))
    a("v_cvt_pk_bf16_f32 v%d, v%d, v%d\nv_cvt_pk_bf16_f32 v%d, v%d, v%d" % (d + 2, b + 4, b + 5, d + 3, b + 6, b + 7))
    z = 140 + 8 * j2
    for i in range(4): a("v_cvt_pk_bf16_f32 v%d, v%d, v%d" % (d + 4 + i, z + 2 * i, z + 2 * i + 1))
    a("v_permlane16_swap_b32 v%d, v%d\nv_permlane16_swap_b32 v%d, v%d" % (d, d + 2, d + 1, d + 3))
    for i in range(4): a("v_and_b32 v%d, v%d, v%d" % (d + 4 + i, d + 4 + i, vMZ))
    a("ds_write_b128 v7, %s offset:%d" % (vr(d, 4), LDS_K + j2 * 1024))
    a("ds_write_b128 v7, %s offset:%d" % (vr(d + 4, 4), LDS_Z + j2 * 1024))
a("s_waitcnt lgkmcnt(0)")
a("s_barrier")
stamp(8)
a("s_lshr_b32 s%d, s%d, 2\ns_lshl_b32 s%d, s%d, 13\nv_lshl_add_u32 v7, v0, 4, s%d" % (sT2, sWAVE, sT2, sT2, sT2))
a("s_mov_b32 s%d, 0x%x" % (sC2, EPS))
vKF, vZF, vA0, vA1, vN0, vN1, vDN, vRV, vBOP = 40, 48, 56, 60, 64, 68, 72, 76, 80
def kz_reads(jj):
    return ["ds_read_b128 %s, v7 offset:%d" % (vr(vKF + 4 * (jj & 1), 4), LDS_K + jj * 1024),
            "ds_read_b128 %s, v7 offset:%d" % (vr(vZF + 4 * (jj & 1), 4), LDS_Z + jj * 1024)]
def ocalc(jj):
    kf, zf, bop = vKF + 4 * (jj & 1), vZF + 4 * (jj & 1), vBOP + 4 * (jj & 1)
    s = []
    for i in range(4): s.append("v_and_b32 v%d, v%d, v%d" % (vA0 + i, kf + i, vM0))
    s.append("v_mfma_f32_16x16x32_bf16 %s, %s, %s, 0" % (vr(vDN, 4), vr(zf, 4), ar(aOP + 4 * jj, 4)))
    for i in range(4): s.append("v_xor_b32 v%d, v%d, v%d" % (vA1 + i, kf + i, vA0 + i))
    s.append("v_mfma_f32_16x16x32_bf16 %s, %s, %s, 0" % (vr(vN0, 4), vr(vA0, 4), ar(aOP + 4 * jj, 4)))
    s.append("v_mfma_f32_16x16x32_bf16 %s, %s, %s, 0" % (vr(vN1, 4), vr(vA1, 4), ar(aOP + 4 * jj, 4)))
    s.append("v_add_f32 v%d, s%d, v%d" % (vRV, sC2, vDN))
    s.append("v_rcp_f32 v%d, v%d" % (vRV, vRV))
    s.append("v_mov_b32 v%d, v%d" % (vRV + 1, vRV))
    s.append("v_permlane32_swap_b32 v%d, v%d" % (vRV, vRV + 1))
    for r in range(4): s.append("v_mul_f32 v%d, v%d, v%d" % (vN0 + r, vN0 + r, vRV))
    for r in range(4): s.append("v_mul_f32 v%d, v%d, v%d" % (vN1 + r, vN1 + r, vRV + 1))
    s.append("v_cvt_pk_bf16_f32 v%d, v%d, v%d" % (bop, vN0, vN0 + 1))
    s.append("v_cvt_pk_bf16_f32 v%d, v%d, v%d" % (bop + 1, vN0 + 2, vN0 + 3))
    s.append("v_cvt_pk_bf16_f32 v%d, v%d, v%d" % (bop + 2, vN1, vN1 + 1))
    s.append("v_cvt_pk_bf16_f32 v%d, v%d, v%d" % (bop + 3, vN1 + 2, vN1 + 3))
    return s
for x in kz_reads(0) + kz_reads(1): a(x)
a("s_waitcnt lgkmcnt(0)")
for x in ocalc(0): a(x)
for jj in range(8):
    a("s_waitcnt lgkmcnt(0)")
    g = []
    nxt = (wo_reads(jj + 1, 4096) if jj < 7 else [])
    kz = kz_reads(jj + 2) if jj < 6 else []
    bop = vBOP + 4 * (jj & 1)
    mf = ["v_mfma_f32_16x16x32_bf16 %s, %s, %s, %s" % (vr(vACC + 4 * c8, 4), ar(aWO + 32 * (jj & 1) + 4 * c8, 4), vr(bop, 4), "0" if jj == 0 else vr(vACC + 4 * c8, 4)) for c8 in range(8)]
    oc = ocalc(jj + 1) if jj < 7 else []
    streams = [oc, mf, nxt + kz]
    for x in sched.interleave(streams, weights=[3, 1, 2]): a(x)

a("L_p2red:")
stamp(9)
a("s_barrier")
a("s_lshr_b32 s%d, s%d, 2" % (sT1, sWAVE))
a("s_cmp_eq_u32 s%d, 0\ns_cbranch_scc0 L_red1" % sT1)
def red(own, other):
    for i in range(4): a("ds_write_b128 v%d, %s offset:%d" % (vRED, vr(vACC + 4 * (other + i), 4), i * 1024))
    a("s_waitcnt lgkmcnt(0)")
    a("s_barrier")
    for i in range(4): a("ds_read_b128 %s, v%d offset:%d" % (vr(40 + 4 * i, 4), vRED + 1, i * 1024))
    for i in range(4):
        a("s_waitcnt lgkmcnt(%d)" % (3 - i))
        for r in range(4): a("v_add_f32 v%d, v%d, v%d" % (40 + 4 * i + r, 40 + 4 * i + r, vACC + 4 * (own + i) + r))
        a("v_cvt_pk_bf16_f32 v%d, v%d, v%d\nv_cvt_pk_bf16_f32 v%d, v%d, v%d" % (60 + 2 * i, 40 + 4 * i, 41 + 4 * i, 61 + 2 * i, 42 + 4 * i, 43 + 4 * i))
        if i & 1:
            b = 60 + 2 * (i - 1)
            a("v_permlane16_swap_b32 v%d, v%d\nv_permlane16_swap_b32 v%d, v%d" % (b, b + 2, b + 1, b + 3))
            a("buffer_store_dwordx4 %s, v%d, s[%d:%d], 0 offen offset:%d" % (vr(b, 4), vOUT, sOUT, sOUT + 3, (i >> 1) * 64))
red(0, 4)
a("s_branch L_fin")
a("L_red1:")
red(4, 0)
a("L_fin:")
if STAMPS:
    stamp(10)
    a("s_waitcnt vmcnt(0)")
    stamp(11)
    a("s_waitcnt lgkmcnt(0)")
    if STAMPS == 3:
        a("s_cmp_eq_u32 s2, %d\ns_cbranch_scc0 L_end\ns_cmp_eq_u32 s%d, 0\ns_cbranch_scc0 L_end" % (OPT.get("ampwg", 0), sWAVE))
        a("s_sub_u32 s%d, s%d, s%d\ns_mul_i32 s%d, s%d, %d" % (sT0, sSTB + 2 * OPT["ampb"], sSTB + 2 * OPT["ampa"], sT0, sT0, OPT["amp"]))
        a("s_add_u32 s%d, s%d, s%d" % (sT0, sT0, sSTB + 22))
        a("s_mov_b32 s%d, 0" % sCNT)
        a("L_amp:\ns_memrealtime s[%d:%d]\ns_waitcnt lgkmcnt(0)\ns_add_u32 s%d, s%d, 1\ns_cmp_gt_u32 s%d, 200000\ns_cbranch_scc1 L_end" % (sT2, sT3, sCNT, sCNT, sCNT))
        a("s_sub_u32 s%d, s%d, s%d\ns_cmp_lt_i32 s%d, 0\ns_cbranch_scc1 L_amp\ns_branch L_end" % (sT1, sT2, sT0, sT1))
    if STAMPS == 2:
        a("s_and_b32 s%d, s%d, 3\ns_cmp_eq_u32 s%d, 0\ns_cbranch_scc0 L_end" % (sT0, sWAVE, sT0))
        a("s_mov_b64 exec, 1")
        a("s_not_b32 s%d, s%d" % (sSTB, sSTB))
        for j in range(NSTAMP):
            a("v_mov_b32 v6, s%d\nv_mov_b32 v5, %d" % (sSTB + 2 * j, 4 * j))
            a("buffer_atomic_umax v6, v5, s[%d:%d], 0 offen sc1" % (sDBG, sDBG + 3))
        a("s_lshl_b32 s%d, s%d, 2\ns_add_u32 s%d, s%d, 48\nv_mov_b32 v5, s%d\nv_mov_b32 v6, s%d" % (sT0, sBR, sT0, sT0, sT0, sSTB + 22))
        a("buffer_atomic_umax v6, v5, s[%d:%d], 0 offen sc1" % (sDBG, sDBG + 3))
        a("s_branch L_end")
    a("s_and_b32 s%d, s%d, 3\ns_cmp_eq_u32 s%d, 0\ns_cbranch_scc0 L_end" % (sT0, sWAVE, sT0))
    a("s_lshr_b32 s%d, s%d, 2\ns_lshl_b32 s%d, s2, 1\ns_add_u32 s%d, s%d, s%d\ns_mul_i32 s%d, s%d, %d\ns_add_u32 s%d, s%d, 0x%x" % (sT0, sWAVE, sT1, sT0, sT0, sT1, sT0, sT0, NSTAMP * 8, sT0, sT0, WS_STAMP))
    a("v_mov_b32 v5, s%d" % sT0)
    for j in range(NSTAMP):
        a("v_mov_b32 v6, s%d\nv_mov_b32 v7, s%d" % (sSTB + 2 * j, sSTB + 2 * j + 1))
        a("buffer_store_dwordx2 v[6:7], v5, s[%d:%d], 0 offen offset:%d" % (sWS, sWS + 3, 8 * j))
a("L_end:\ns_endpgm")

body = a.finalize()
hdr = open("concat_heads__linear_attn_block__sliding_local_dilated__prompt.s.ref").read().split("; Override launch")[0]
txt = hdr + "; @launch grid=(256,1,1) block=(512,1,1) lds=%d\n" % LDS_BYTES
txt += '.amdgcn_target "amdgcn-amd-amdhsa--gfx950"\n.text\n.globl %s\n.p2align 8\n.type %s,@function\n%s:\n' % (KN, KN, KN)
txt += body
txt += ('.section .rodata,"a"\n.p2align 6\n.amdhsa_kernel %s\n  .amdhsa_next_free_vgpr 256\n  .amdhsa_next_free_sgpr 102\n'
        '  .amdhsa_accum_offset 160\n  .amdhsa_group_segment_fixed_size 0\n  .amdhsa_kernarg_size 72\n  .amdhsa_user_sgpr_count 2\n'
        '  .amdhsa_user_sgpr_kernarg_segment_ptr 1\n  .amdhsa_system_sgpr_workgroup_id_x 1\n  .amdhsa_float_denorm_mode_32 3\n.end_amdhsa_kernel\n') % KN
open(sys.argv[1], "w").write(txt)
print("instructions:", a.count)
```

```python
import sys
from isa import Asm, Ins
import sched

KN = "concat_heads__linear_attn_block__sliding_local_dilated__prompt_kernel"
OPT = dict(stamps=0, rot=1, stop=99, prio=0, sleep=2, touch=0, pre=2, pace=1)
for x in sys.argv[2:]:
    k, v = x.split("="); OPT[k] = int(v)
STAMPS = OPT["stamps"]
NTW = " nt" if OPT.get("ntw", 0) else ""
NTX = " nt" if OPT.get("ntx", 0) else ""
ATOM = " sc1" if OPT.get("atomsc1", 1) else ""

WS_FLAG = 0x0
WS_KV = 0x4000
WS_Z = 0xC000
WS_OP = 0x100000
WS_STAMP = 128 << 20
WS_BYTES = 268435456
SLOT = 43008
WOFF = 18432
WO_BASE = 32768
LDS_K = 0
LDS_Z = 16384
LDS_BYTES = 163840
BIG = 0xf149f2ca
EPS = 0x358637bd
LOG2E = 0x3fb8aa3b
NEG_EPS_LOG2E = 0xb5c1a4b9
import struct
def f2u(f): return struct.unpack("<I", struct.pack("<f", f))[0]
import math
LOG2E = f2u(math.log2(math.e)); EPS = f2u(1e-6); BIG = f2u(-1e30)
NEG_EPS_LOG2E = f2u(-1e-6 * math.log2(math.e))
SCALE_C = f2u(0.25 * math.log2(math.e))

sX, sW, sWO, sOUT, sWS, sDBG = 20, 24, 28, 32, 36, 40
sBR, sRT, sHG, sWAVE, sRB, sCT, sLW, sROT = 44, 45, 46, 47, 48, 49, 50, 51
sT0, sT1, sT2, sT3, sT4, sT5 = 52, 53, 54, 55, 56, 57
sX0, sX1, sH, sW0, sW1, sW2, sKC = 58, 59, 60, 61, 62, 63, 64
sM, sCNT, sSAVE = 65, 66, 68
sC0, sC1, sC2, sC3 = 70, 71, 72, 73
sSTB = 76
NSTAMP = 12

a = Asm()

def stamp(i, force=False):
    if OPT.get("bst", 0) and i >= 3 and not force: return
    if STAMPS:
        if OPT.get("clk", 0):
            a("s_memtime s[%d:%d]" % (sSTB + 2 * i, sSTB + 2 * i + 1))
        else:
            a("s_memrealtime s[%d:%d]" % (sSTB + 2 * i, sSTB + 2 * i + 1))

def stamp_wait():
    if STAMPS:
        a("s_waitcnt lgkmcnt(0)")

def srd(d, base, nbytes):
    a("s_mov_b32 s%d, s%d\ns_and_b32 s%d, s%d, 0xffff\ns_mov_b32 s%d, 0x%x\ns_mov_b32 s%d, 0x00020000" % (d, base, d + 1, base + 1, d + 2, nbytes, d + 3))

def vr(b, n=1):
    return "v%d" % b if n == 1 else "v[%d:%d]" % (b, b + n - 1)
def ar(b, n=1):
    return "a%d" % b if n == 1 else "a[%d:%d]" % (b, b + n - 1)

a("s_cmp_ge_u32 s2, 256\ns_cbranch_scc1 L_end")
if STAMPS:
    for i in range(2 * NSTAMP): a("s_mov_b32 s%d, 0" % (sSTB + i))
stamp(0)
a("s_and_b32 s%d, s2, 7" % sT0)
a("s_lshr_b32 s%d, s2, 3" % sT1)
a("s_lshr_b32 s%d, s%d, 2" % (sBR, sT0))
a("s_mul_i32 s%d, s%d, 24" % (sT2, sBR))
a("s_add_u32 s18, s0, s%d\ns_addc_u32 s19, s1, 0" % sT2)
a("s_load_dwordx4 s[4:7], s[18:19], 0")
a("s_load_dwordx2 s[8:9], s[18:19], 16")
a("s_load_dwordx4 s[12:15], s[0:1], 48")
a("s_load_dwordx2 s[16:17], s[0:1], 64")
a("v_lshrrev_b32 v1, 6, v0\nv_and_b32 v0, 63, v0")
a("s_and_b32 s%d, s%d, 1\ns_lshl_b32 s%d, s%d, 3\ns_and_b32 s%d, s%d, 7\ns_add_u32 s%d, s%d, s%d" % (sT2, sT0, sT2, sT2, sT3, sT1, sRT, sT2, sT3))
a("v_readfirstlane_b32 s%d, v1" % sWAVE)
a("s_lshr_b32 s%d, s%d, 1\ns_and_b32 s%d, s%d, 1\ns_lshl_b32 s%d, s%d, 2\ns_lshr_b32 s%d, s%d, 3\ns_add_u32 s%d, s%d, s%d" % (sT2, sT0, sT2, sT2, sT2, sT2, sT4, sT1, sHG, sT2, sT4))
a("s_and_b32 s%d, s%d, 3\ns_lshl_b32 s%d, s%d, 3\ns_lshr_b32 s%d, s%d, 2\ns_add_u32 s%d, s%d, s%d" % (sT2, sT0, sT2, sT2, sT5, sT1, sRB, sT2, sT5))
a("s_and_b32 s%d, s%d, 3" % (sCT, sT1))
if OPT["rot"] == 1:
    a("s_lshl_b32 s%d, s%d, 1\ns_add_u32 s%d, s%d, s%d\ns_and_b32 s%d, s%d, 7" % (sROT, sT4, sROT, sROT, sT3, sROT, sROT))
elif OPT["rot"] == 2:
    a("s_and_b32 s%d, s%d, 1\ns_lshl_b32 s%d, s%d, 2" % (sROT, sT3, sROT, sROT))
else:
    a("s_mov_b32 s%d, 0" % sROT)
a("s_and_b32 s%d, s%d, 3" % (sLW, sWAVE))
a("s_waitcnt lgkmcnt(0)")
stamp(1)
srd(sX, 4, 2048 * 1024)
srd(sW, 6, 512 * 3072)
srd(sWO, 8, 512 * 1024)
srd(sOUT, 12, 2048 * 2048)
srd(sDBG, 14, 256)
srd(sWS, 16, WS_BYTES)
a("s_cmp_ge_u32 s%d, 4\ns_cbranch_scc1 L_loader" % sWAVE)

vQ, vK, vKH, vV, vVH = 8, 40, 72, 76, 108
vXR = 112
vWR = 118
vB = 121
vBC, vBP, vBH0, vBH1, vMC = 122, 126, 130, 134, 138
vTMP = 140
aXF, aWF = 0, 36

if OPT.get("touch", 1):
    a("s_lshr_b32 s%d, s2, 3\ns_and_b32 s%d, s%d, 7\ns_lshr_b32 s%d, s%d, 3" % (sT0, sT1, sT0, sT2, sT0))
    a("v_lshrrev_b32 v1, 5, v0\nv_and_b32 v2, 31, v0")
    a("s_lshl_b32 s%d, s%d, 1\ns_add_u32 s%d, s%d, %d\ns_add_u32 s%d, s%d, s%d" % (sT3, sWAVE, sT3, sT3, OPT.get("t0", 1), sT3, sT3, sROT))
    a("v_add_u32 v3, s%d, v1\nv_and_b32 v3, 7, v3" % sT3)
    a("s_lshl_b32 s%d, s%d, 7\ns_lshl_b32 s%d, s%d, 5\ns_add_u32 s%d, s%d, s%d" % (sT4, sRT, sT5, sT2, sT4, sT4, sT5))
    a("v_add_u32 v4, s%d, v2\nv_lshlrev_b32 v4, 10, v4\nv_lshl_add_u32 v4, v3, 7, v4" % sT4)
    a("s_mul_i32 s%d, s%d, 24\nv_min_u32 v5, 23, v2\nv_add_u32 v5, s%d, v5" % (sT4, sT1, sT4))
    a("v_and_b32 v6, 63, v5\nv_lshl_add_u32 v6, v3, 6, v6\nv_mul_u32_u24 v6, 3072, v6\nv_lshrrev_b32 v5, 6, v5\nv_lshl_add_u32 v6, v5, 10, v6")
    a("s_lshl_b32 s%d, s%d, 7\nv_add_u32 v159, s%d, v6\nv_mov_b32 v158, v4" % (sT4, sHG, sT4))
TP = [OPT.get("tp0", 0), OPT.get("tp1", 0), OPT.get("tp2", 0), OPT.get("tp3", 0)]
def touch_at(point):
    if not OPT.get("touch", 1): return
    ws_ = [w for w in range(4) if TP[w] == point]
    if not ws_: return
    lab = a.lab("L_tch")
    if len(ws_) < 4:
        mask = sum(1 << w for w in ws_)
        a("s_lshl_b32 s%d, 1, s%d\ns_and_b32 s%d, s%d, %d\ns_cbranch_scc0 %s" % (sT0, sWAVE, sT0, sT0, mask, lab))
    a("buffer_load_dword v156, v158, s[%d:%d], 0 offen" % (sX, sX + 3))
    a("buffer_load_dword v157, v159, s[%d:%d], 0 offen" % (sW, sW + 3))
    a("%s:" % lab)
if OPT.get("pace", 1): a("s_barrier")
touch_at(0)
if OPT.get("pace", 1) >= 2: a("s_barrier")
a("v_and_b32 v1, 15, v0\nv_lshrrev_b32 v2, 4, v0")
a("v_lshrrev_b32 v3, 1, v1")
a("v_xor_b32 v4, v3, v2")
a("v_lshlrev_b32 v5, 7, v1\nv_lshl_add_u32 v5, v4, 4, v5")
for s_ in range(3):
    a("v_add_u32 v%d, %d, v5" % (vXR + 2 * s_, s_ * SLOT))
    a("v_xor_b32 v%d, 64, v%d" % (vXR + 2 * s_ + 1, vXR + 2 * s_))
a("v_bfe_u32 v3, v0, 2, 2\nv_and_b32 v4, 3, v0")
a("v_lshl_add_u32 v5, v2, 3, v3\nv_lshlrev_b32 v5, 7, v5")
a("v_lshrrev_b32 v6, 1, v3\nv_and_b32 v7, 1, v2\nv_lshl_or_b32 v6, v7, 1, v6")
a("v_xor_b32 v6, s%d, v6" % sWAVE)
a("v_lshl_add_u32 v5, v6, 5, v5\nv_lshl_add_u32 v5, v4, 3, v5")
for s_ in range(3):
    a("v_add_u32 v%d, %d, v5" % (vWR + s_, s_ * SLOT + WOFF))
a("s_cmp_eq_u32 s%d, 0\ns_cbranch_scc0 L_mainB" % sBR)

def c_of(step): return step >> 1
def main_loop(br):
    NT = 9 if br else 8
    lg = []
    def rd_x(step, t):
        c, st = step >> 1, step & 1
        s_ = c % 3
        a("ds_read_b128 %s, v%d offset:%d" % (ar(aXF + 4 * t, 4), vXR + 2 * s_ + st, t * 2048)); lg.append(("x", step, t))
    def rd_w(step, i):
        c, st = step >> 1, step & 1
        s_ = c % 3
        part, rd = i >> 1, i & 1
        a("ds_read_b64_tr_b16 %s, v%d offset:%d" % (ar(aWF + 12 * (step & 1) + 4 * part + 2 * rd, 2), vWR + s_, part * 8192 + st * 4096 + rd * 512)); lg.append(("w", step, i))
    def need(keys):
        last = -1
        for i, k in enumerate(lg):
            if k in keys: last = i
        if last >= 0:
            n = len(lg) - 1 - last
            a("s_waitcnt lgkmcnt(%d)" % min(n, 15))
            if n > 15: n = 15
            del lg[:len(lg) - n]
    a("s_barrier")
    stamp(2)
    touch_at(1)
    for i in range(6): rd_w(0, i)
    for t in range(NT): rd_x(0, t)
    for step in range(16):
        st = step & 1
        last = step == 15
        pend = []
        if not last:
            pend = [("w", i) for i in range(6)]
        deferred = []
        for t in range(NT):
            keys = [("x", step, t)]
            if t == 0: keys += [("w", step, i) for i in range(6)]
            need(keys)
            wb = aWF + 12 * (step & 1)
            xf = ar(aXF + 4 * t, 4)
            def cop(acc, eps):
                if step == 0: return vr(vTMP, 4) if eps else "0"
                return vr(acc, 4)
            if t < 8:
                a("v_mfma_f32_16x16x32_bf16 %s, %s, %s, %s" % (vr(vQ + 4 * t, 4), ar(wb, 4), xf, cop(vQ + 4 * t, br == 0)))
                kacc, vacc = vK + 4 * t, vV + 4 * t
            else:
                kacc, vacc = vKH, vVH
            if br:
                a("v_mfma_f32_16x16x32_bf16 %s, %s, %s, %s" % (vr(kacc, 4), ar(wb + 4, 4), xf, cop(kacc, False)))
            else:
                a("v_mfma_f32_16x16x32_bf16 %s, %s, %s, %s" % (vr(kacc, 4), xf, ar(wb + 4, 4), cop(kacc, True)))
            a("v_mfma_f32_16x16x32_bf16 %s, %s, %s, %s" % (vr(vacc, 4), xf, ar(wb + 8, 4), cop(vacc, False)))
            if st == 1 and t <= 2:
                if not last: deferred.append(("x", t))
                if t == 2:
                    a("s_waitcnt lgkmcnt(0)"); del lg[:]
                    a("s_barrier")
                    touch_at(c_of(step) + 2)
                    if OPT.get("bst", 0): stamp(3 + c_of(step), True)
                    pend = pend + deferred if not last else []
                    if not last:
                        k = 0
                        while k < 3 and pend:
                            kind, i = pend.pop(0); rd_w(step + 1, i) if kind == "w" else rd_x(step + 1, i); k += 1
                continue
            if last: continue
            npend = 2
            if st == 1:
                pend.append(("x", t))
                k = 0
                while k < 3 and pend:
                    kind, i = pend.pop(0); rd_w(step + 1, i) if kind == "w" else rd_x(step + 1, i); k += 1
            else:
                rd_x(step + 1, t)
                k = 0
                while k < npend and pend:
                    kind, i = pend.pop(0); rd_w(step + 1, i); k += 1
        while pend:
            kind, i = pend.pop(0); rd_w(step + 1, i) if kind == "w" else rd_x(step + 1, i)
    a("s_waitcnt vmcnt(0)")
    stamp(3)
    if OPT.get("bst", 0): stamp(11, True)

def store_op(base0, npairs, first_pair=0):
    pass

def op_store_addr(vd):
    a("v_and_b32 v3, 1, v2\nv_lshlrev_b32 v3, 14, v3")
    a("v_lshrrev_b32 v4, 1, v2\nv_lshl_add_u32 v3, v4, 9, v3\nv_lshl_add_u32 v3, v1, 4, v3")
    a("s_lshl_b32 s%d, s%d, 17" % (sT0, sRT))
    a("s_lshl_b32 s%d, s%d, 11\ns_add_u32 s%d, s%d, s%d" % (sT1, sHG, sT0, sT0, sT1))
    a("s_lshr_b32 s%d, s%d, 1\ns_lshl_b32 s%d, s%d, 10\ns_add_u32 s%d, s%d, s%d" % (sT1, sWAVE, sT1, sT1, sT0, sT0, sT1))
    a("s_and_b32 s%d, s%d, 1\ns_lshl_b32 s%d, s%d, 8\ns_add_u32 s%d, s%d, s%d" % (sT1, sWAVE, sT1, sT1, sT0, sT0, sT1))
    a("s_lshl_b32 s%d, s%d, 21\ns_add_u32 s%d, s%d, s%d\ns_add_u32 s%d, s%d, 0x%x" % (sT1, sBR, sT0, sT0, sT1, sT0, sT0, WS_OP))
    a("v_add_u32 v%d, s%d, v3" % (vd, sT0))

vOPA = 7
vKVA = 6

a("L_mainA:")
a("v_mov_b32 v%d, 0x%x" % (vTMP, EPS))
for i in range(1, 4): a("v_mov_b32 v%d, v%d" % (vTMP + i, vTMP))
op_store_addr(vOPA)
a("s_lshl_b32 s%d, s%d, 2\ns_add_u32 s%d, s%d, s%d" % (sT0, sHG, sT0, sT0, sWAVE))
a("s_lshl_b32 s%d, s%d, 10\ns_add_u32 s%d, s%d, 0x%x" % (sT1, sT0, sT1, sT1, WS_KV))
a("v_lshl_add_u32 v%d, v0, 2, s%d" % (vKVA, sT1))
a("s_lshl_b32 s%d, s%d, 6\ns_add_u32 s%d, s%d, 0x%x" % (sT1, sT0, sT1, sT1, WS_Z))
a("v_lshl_add_u32 v5, v0, 2, s%d" % sT1)
a("s_mov_b32 s%d, 0x%x\ns_mov_b32 s%d, 0x%x\ns_mov_b32 s%d, 0x%x" % (sC0, LOG2E, sC1, NEG_EPS_LOG2E, sC2, EPS))
main_loop(0)

def phi_stream(r0, dst, t0, t1):
    s = []
    for i in range(4):
        s.append("v_fma_f32 v%d, v%d, s%d, v%d" % (t0 + i, r0 + i, sC0, 4))
    for i in range(4):
        s.append("v_exp_f32_e64 v%d, v%d clamp" % (t0 + i, t0 + i))
    for i in range(4):
        s.append("v_max_f32 v%d, s%d, v%d" % (r0 + i, sC2, r0 + i))
    for i in range(4):
        s.append("v_add_f32 v%d, v%d, v%d" % (r0 + i, r0 + i, t0 + i))
    s.append("v_cvt_pk_bf16_f32 v%d, v%d, v%d" % (dst, r0, r0 + 1))
    s.append("v_cvt_pk_bf16_f32 v%d, v%d, v%d" % (dst + 1, r0 + 2, r0 + 3))
    return s

a("v_mov_b32 v4, s%d" % sC1)
vKP, vVP, vQP = 112, 128, 144
ONES = 72
for i in range(4): a("v_mov_b32 v%d, 0x3f803f80" % (ONES + i))
TQ = [108, 72 + 0]
streams = []
tq = [160 - 0]
for t in range(0, 8, 2):
    s0 = phi_stream(vK + 4 * t, vKP + 2 * t, 108, None)
    s1 = phi_stream(vK + 4 * (t + 1), vKP + 2 * (t + 1), 144, None)
    sv = ["v_cvt_pk_bf16_f32 v%d, v%d, v%d" % (vVP + 2 * tt + i, vV + 4 * tt + 2 * i, vV + 4 * tt + 2 * i + 1) for tt in (t, t + 1) for i in range(2)]
    for x in sched.interleave([s0, s1, sv]): a(x)
    acc_kv, acc_z = 76, 80
    cop = lambda r: "0" if t == 0 else vr(r, 4)
    a("v_mfma_f32_16x16x32_bf16 %s, %s, %s, %s" % (vr(acc_kv, 4), vr(vKP + 2 * t, 4), vr(vVP + 2 * t, 4), cop(acc_kv)))
    a("v_mfma_f32_16x16x32_bf16 %s, %s, %s, %s" % (vr(acc_z, 4), vr(ONES, 4), vr(vKP + 2 * t, 4), cop(acc_z)))
stamp(4)
for r in range(4):
    a("buffer_atomic_add_f32 v%d, v%d, s[%d:%d], 0 offen offset:%d%s" % (76 + r, vKVA, sWS, sWS + 3, r * 256, ATOM))
a("s_mov_b64 s[%d:%d], exec\ns_mov_b64 exec, 0xffff" % (sSAVE, sSAVE + 1))
a("buffer_atomic_add_f32 v80, v5, s[%d:%d], 0 offen%s" % (sWS, sWS + 3, ATOM))
a("s_mov_b64 exec, s[%d:%d]" % (sSAVE, sSAVE + 1))
for t in range(0, 8, 2):
    s0 = phi_stream(vQ + 4 * t, vQP + 2 * t, 108, None)
    s1 = phi_stream(vQ + 4 * (t + 1), vQP + 2 * (t + 1), 84, None)
    for x in sched.interleave([s0, s1]): a(x)
    b = vQP + 2 * t
    a("v_permlane16_swap_b32 v%d, v%d\nv_permlane16_swap_b32 v%d, v%d" % (b, b + 2, b + 1, b + 3))
    a("s_mov_b32 s%d, %d" % (sT0, t * 16384))
    a("buffer_store_dwordx4 %s, v%d, s[%d:%d], s%d offen sc1" % (vr(b, 4), vOPA, sWS, sWS + 3, sT0))
stamp(5)
a("s_waitcnt vmcnt(0)")
a("s_barrier")
a("s_branch L_p2wait")

a("L_mainB:")
op_store_addr(vOPA)
a("v_lshlrev_b32 v3, 2, v2")
a("v_mov_b32 v6, 0x%x" % BIG)
for r in range(4):
    a("v_add_u32 v4, %d, v3" % r)
    a("v_sub_u32 v5, v1, v4")
    a("v_cmp_gt_u32 vcc, 8, v5")
    a("v_cndmask_b32_e64 v%d, v6, 0, vcc" % (vBC + r))
    if r % 2 == 0:
        a("v_cndmask_b32_e64 v%d, 0, -1, vcc\nv_and_b32 v%d, 0xffff, v%d" % (vMC + r // 2, vMC + r // 2, vMC + r // 2))
    else:
        a("v_cndmask_b32_e64 v5, 0, -1, vcc\nv_and_b32 v5, 0xffff0000, v5\nv_or_b32 v%d, v%d, v5" % (vMC + r // 2, vMC + r // 2))
    a("v_sub_u32 v5, v4, v1")
    a("v_cmp_le_i32 vcc, 9, v5")
    a("v_cndmask_b32_e64 v%d, v6, 0, vcc" % (vBP + r))
    a("v_cmp_le_i32 vcc, 1, v5\nv_cndmask_b32_e64 v%d, v6, 0, vcc" % (vBH0 + r))
    a("v_cmp_ge_u32 vcc, 7, v4\nv_cndmask_b32_e64 v%d, v6, v%d, vcc" % (vBH0 + r, vBH0 + r))
    a("v_mov_b32 v%d, v%d" % (vBH1 + r, vBP + r))
a("s_cmp_eq_u32 s%d, 0\ns_cbranch_scc0 L_nomask" % sRT)
for r in range(4):
    a("v_mov_b32 v%d, v6\nv_mov_b32 v%d, v6" % (vBH0 + r, vBH1 + r))
a("L_nomask:")
a("s_mov_b32 s%d, 0x%x" % (sC0, SCALE_C))
main_loop(1)
vVP = 140; vKPb = 76; vQPb = 94
def VP(p, u): return vVP + 10 * p + 2 * (u + 1)
def KP(t): return vKPb + 2 * t
def QP(t): return vQPb + 2 * t
pk = lambda d, s: ["v_cvt_pk_bf16_f32 v%d, v%d, v%d" % (d, s, s + 1), "v_cvt_pk_bf16_f32 v%d, v%d, v%d" % (d + 1, s + 2, s + 3)]
for t in range(8):
    for x in pk(VP(t & 1, t >> 1), vV + 4 * t): a(x)
for x in pk(VP(0, -1), vVH): a(x)
a("v_mov_b32 v%d, v%d\nv_mov_b32 v%d, v%d" % (VP(1, -1), VP(0, -1), VP(1, -1) + 1, VP(0, -1) + 1))
for t in range(8):
    for x in pk(KP(t), vK + 4 * t): a(x)
for x in pk(KP(8), vKH): a(x)
for t in range(8):
    for x in pk(QP(t), vQ + 4 * t): a(x)
ONESB = 110
ONESB = 112
for i in range(4): a("v_mov_b32 v%d, 0x3f803f80" % (ONESB + i))
def unit(t, T):
    p, u = t & 1, t >> 1
    SP, SC, SM, m0, m1 = T, T + 4, T + 8, T + 12, T + 13
    tp = 8 if u == 0 else t - 2
    bias = (vBH0 if p == 0 else vBH1) if u == 0 else vBP
    s = []
    s.append("v_mfma_f32_16x16x16_bf16 %s, %s, %s, %s" % (vr(SP, 4), vr(KP(tp), 2), vr(QP(t), 2), vr(bias, 4)))
    s.append("v_mfma_f32_16x16x16_bf16 %s, %s, %s, %s" % (vr(SC, 4), vr(KP(t), 2), vr(QP(t), 2), vr(vBC, 4)))
    for r in range(4): s.append("v_max_f32 v%d, v%d, v%d" % (SC + r, SC + r, SP + r))
    s.append("v_max3_f32 v%d, v%d, v%d, v%d" % (m0, SC, SC + 1, SC + 2))
    s.append("v_max_f32 v%d, v%d, v%d" % (m0, m0, SC + 3))
    s.append("v_mov_b32 v%d, v%d" % (m1, m0))
    s.append("v_permlane16_swap_b32 v%d, v%d" % (m0, m1))
    s.append("v_max_f32 v%d, v%d, v%d" % (m0, m0, m1))
    s.append("v_mov_b32 v%d, v%d" % (m1, m0))
    s.append("v_permlane32_swap_b32 v%d, v%d" % (m0, m1))
    s.append("v_max_f32 v%d, v%d, v%d" % (m0, m0, m1))
    s.append("v_mul_f32 v%d, s%d, v%d" % (m0, sC0, m0))
    for r in range(4): s.append("v_fma_f32 v%d, v%d, s%d, -v%d" % (SC + r, SC + r, sC0, m0))
    for r in range(4): s.append("v_exp_f32 v%d, v%d" % (SC + r, SC + r))
    s.append("v_cvt_pk_bf16_f32 v%d, v%d, v%d" % (SC, SC, SC + 1))
    s.append("v_cvt_pk_bf16_f32 v%d, v%d, v%d" % (SC + 1, SC + 2, SC + 3))
    s.append("v_and_b32 v%d, v%d, v%d" % (SP + 2, SC, vMC))
    s.append("v_and_b32 v%d, v%d, v%d" % (SP + 3, SC + 1, vMC + 1))
    s.append("v_xor_b32 v%d, v%d, v%d" % (SP, SC, SP + 2))
    s.append("v_xor_b32 v%d, v%d, v%d" % (SP + 1, SC + 1, SP + 3))
    s.append("v_mfma_f32_16x16x32_bf16 %s, %s, %s, 0" % (vr(SM, 4), vr(ONESB, 4), vr(SP, 4)))
    s.append("v_mfma_f32_16x16x32_bf16 %s, %s, %s, 0" % (vr(SC, 4), vr(VP(p, u - 1), 4), vr(SP, 4)))
    s.append("v_rcp_f32 v%d, v%d" % (m0, SM))
    for r in range(4): s.append("v_mul_f32 v%d, v%d, v%d" % (SC + r, SC + r, m0))
    s.append("v_cvt_pk_bf16_f32 v%d, v%d, v%d" % (QP(t), SC, SC + 1))
    s.append("v_cvt_pk_bf16_f32 v%d, v%d, v%d" % (QP(t) + 1, SC + 2, SC + 3))
    return s
for grp in range(2):
    ss = [unit(4 * grp + i, 8 + 16 * i) for i in range(4)]
    for x in sched.interleave(ss): a(x)
    for u in (2 * grp, 2 * grp + 1):
        b = QP(2 * u)
        a("v_permlane16_swap_b32 v%d, v%d\nv_permlane16_swap_b32 v%d, v%d" % (b, b + 2, b + 1, b + 3))
        a("s_mov_b32 s%d, %d" % (sT0, 2 * u * 16384))
        a("buffer_store_dwordx4 %s, v%d, s[%d:%d], s%d offen sc1" % (vr(b, 4), vOPA, sWS, sWS + 3, sT0))
stamp(5)
a("s_waitcnt vmcnt(0)")
a("s_barrier")
a("s_branch L_p2wait")

a("L_loader:")
a("v_lshrrev_b32 v1, 3, v0\nv_and_b32 v2, 7, v0")
vXS, vHS, vWS_, vWOS = 8, 10, 12, 14
a("v_lshrrev_b32 v3, 1, v1")
for mh in range(2):
    a("v_or_b32 v4, %d, v3\nv_xor_b32 v4, v4, v2\nv_lshlrev_b32 v4, 4, v4" % (4 * mh))
    a("v_lshl_add_u32 v4, v1, 11, v4\nv_add_u32 v%d, %d, v4" % (vXS + mh, mh * 16 * 1024))
a("s_lshl_b32 s%d, s%d, 2\nv_add_u32 v4, s%d, v1" % (sT0, sLW, sT0))
a("v_and_b32 v5, 7, v4\nv_lshlrev_b32 v5, 1, v5\nv_lshrrev_b32 v6, 3, v4\nv_add_u32 v5, v5, v6")
a("s_lshl_b32 s%d, s%d, 7\ns_sub_u32 s%d, s%d, 16\nv_add_u32 v5, s%d, v5\nv_max_i32 v5, 0, v5" % (sT0, sRT, sT0, sT0, sT0))
a("v_lshrrev_b32 v6, 1, v4\nv_and_b32 v6, 7, v6\nv_xor_b32 v6, v6, v2\nv_lshlrev_b32 v6, 4, v6\nv_lshl_add_u32 v%d, v5, 10, v6" % vHS)
a("v_and_b32 v4, 1, v3\nv_lshrrev_b32 v5, 1, v2\nv_and_b32 v6, 1, v2")
a("v_mul_u32_u24 v7, 3072, v1")
for kp in range(2):
    a("v_or_b32 v16, %d, v4\nv_xor_b32 v16, v16, v5\nv_lshlrev_b32 v16, 5, v16\nv_lshl_add_u32 v16, v6, 4, v16" % (2 * kp))
    a("v_add_u32 v16, v16, v7\nv_add_u32 v%d, %d, v16" % (vWS_ + kp, kp * 8 * 3072))
a("v_lshrrev_b32 v3, 4, v0\nv_bfe_u32 v4, v0, 1, 3\nv_and_b32 v5, 1, v0")
a("s_lshl_b32 s%d, s%d, 8" % (sT0, sCT))
a("s_and_b32 s%d, s%d, 1" % (sT1, sLW))
for b in range(2):
    a("s_cmp_eq_u32 s%d, 0\ns_cselect_b32 s%d, s%d, %d\ns_lshl_b32 s%d, s%d, 2" % (sBR, sT2, sT1, b, sT2, sT2))
    a("v_or_b32 v6, s%d, v3\nv_xor_b32 v6, v6, v4\nv_lshlrev_b32 v6, 5, v6\nv_lshl_add_u32 v6, v5, 4, v6" % sT2)
    a("v_lshl_add_u32 v6, v3, 10, v6\nv_add_u32 v%d, s%d, v6" % (vWOS + b, sT0))

a("v_and_b32 v25, 7, v0\nv_lshlrev_b32 v25, 2, v25\nv_add_u32 v25, 128, v25\nv_mov_b32 v24, 0")
def dma(vaddr, srd_, soff, ldsreg_or_imm):
    a("s_mov_b32 m0, %s" % ldsreg_or_imm)
    a("buffer_load_dwordx4 v%d, s[%d:%d], s%d offen lds" % (vaddr, srd_, srd_ + 3, soff))

def loader(br):
    n = 11 if br else 10
    sLX, sLH, sLWb = 74, 75, 67
    a("s_lshl_b32 s%d, s%d, 12" % (sLX, sLW))
    a("s_lshl_b32 s%d, s%d, 9\ns_add_u32 s%d, s%d, 16384" % (sLH, sLW, sLH, sLH))
    a("s_lshl_b32 s%d, s%d, 11\ns_add_u32 s%d, s%d, %d" % (sLWb, sLW, sLWb, sLWb, WOFF))
    a("s_lshl_b32 s%d, s%d, 17\ns_lshl_b32 s%d, s%d, 15\ns_add_u32 s18, s%d, s%d" % (sT0, sRT, sT1, sLW, sT0, sT1))
    a("s_mul_i32 s%d, s%d, %d\ns_lshl_b32 s%d, s%d, 7\ns_add_u32 s19, s%d, s%d" % (sT0, sLW, 16 * 3072, sT1, sHG, sT0, sT1))
    def chunk(c):
        sl = (c % 3) * SLOT
        a("s_add_u32 s%d, s%d, %d\ns_and_b32 s%d, s%d, 7" % (sKC, sROT, c, sKC, sKC))
        a("s_lshl_b32 s%d, s%d, 7" % (sH, sKC))
        a("s_add_u32 s%d, s18, s%d\ns_add_u32 s%d, s%d, 1024" % (sX0, sH, sX1, sX0))
        a("s_mul_i32 s%d, s%d, %d\ns_add_u32 s%d, s19, s%d" % (sW0, sKC, 64 * 3072, sW0, sW0))
        a("s_add_u32 s%d, s%d, 1024\ns_add_u32 s%d, s%d, 2048" % (sW1, sW0, sW2, sW0))
        def wpart():
          for part, sw in enumerate((sW0, sW1, sW2)):
            for kp in range(2):
                a("s_add_u32 m0, s%d, %d" % (sLWb, sl + part * 8192 + kp * 1024))
                a("buffer_load_dwordx4 v%d, s[%d:%d], s%d offen%s lds" % (vWS_ + kp, sW, sW + 3, sw, NTW))
        xfirst = OPT.get("xfirst", 0) and c >= 1
        if not xfirst: wpart()
        for pp, sx in enumerate((sX0, sX1)):
            for mh in range(2):
                a("s_add_u32 m0, s%d, %d" % (sLX, sl + pp * 2048 + mh * 1024))
                a("buffer_load_dwordx4 v%d, s[%d:%d], s%d offen%s lds" % (vXS + mh, sX, sX + 3, sx, NTX))
        if br:
            a("s_add_u32 m0, s%d, %d" % (sLH, sl))
            a("s_mov_b32 exec_hi, 0")
            a("buffer_load_dwordx4 v%d, s[%d:%d], s%d offen lds" % (vHS, sX, sX + 3, sH))
            a("s_mov_b32 exec_hi, -1")
        if xfirst: wpart()
    def wo(n0, n1):
        for nn in range(n0, n1):
            a("s_lshl_b32 s%d, s%d, 12\ns_add_u32 s%d, s%d, %d" % (sT0, sLW, sT0, sT0, nn * 16384))
            a("s_lshl_b32 s%d, s%d, 10\ns_add_u32 m0, s%d, %d" % (sT1, sLW, sT1, WO_BASE + nn * 4096))
            a("buffer_load_dwordx4 v%d, s[%d:%d], s%d offen lds" % (vWOS + (nn & 1), sWO, sWO + 3, sT0))
    if br == 0:
        a("s_cmp_eq_u32 s%d, 0\ns_cbranch_scc0 L_noinit" % sRT)
        a("s_lshl_b32 s%d, s%d, 2\ns_add_u32 s%d, s%d, s%d" % (sT0, sHG, sT0, sT0, sLW))
        a("s_lshl_b32 s%d, s%d, 10\ns_add_u32 s%d, s%d, 0x%x" % (sT1, sT0, sT1, sT1, WS_KV))
        a("v_lshl_add_u32 v16, v0, 4, s%d" % sT1)
        a("v_mov_b32 v20, 0\nv_mov_b32 v21, 0\nv_mov_b32 v22, 0\nv_mov_b32 v23, 0")
        a("buffer_store_dwordx4 v[20:23], v16, s[%d:%d], 0 offen sc1" % (sWS, sWS + 3))
        a("s_lshl_b32 s%d, s%d, 6\ns_add_u32 s%d, s%d, 0x%x" % (sT1, sT0, sT1, sT1, WS_Z))
        a("s_lshl_b32 s%d, s%d, 8\ns_add_u32 s%d, s%d, %d\ns_sub_u32 s%d, s%d, 64" % (sT2, sT0, sT2, sT2, WS_FLAG, sT2, sT2))
        a("v_lshl_add_u32 v17, v0, 4, s%d\nv_lshl_add_u32 v18, v0, 4, s%d" % (sT1, sT2))
        a("v_cmp_gt_u32 vcc, 4, v0\nv_cndmask_b32 v17, v18, v17, vcc")
        a("s_mov_b64 s[%d:%d], exec\ns_mov_b64 exec, 0xfffff" % (sSAVE, sSAVE + 1))
        a("buffer_store_dwordx4 v[20:23], v17, s[%d:%d], 0 offen sc1" % (sWS, sWS + 3))
        a("s_mov_b64 exec, s[%d:%d]" % (sSAVE, sSAVE + 1))
        a("L_noinit:")
    PRE = OPT.get("pre", 3)
    chunk(0)
    if OPT.get("pace", 1): a("s_barrier")
    if PRE >= 2: chunk(1)
    if OPT.get("pace", 1) >= 2: a("s_barrier")
    if PRE >= 3: chunk(2)
    for c in range(8):
        if c == 0: w = (PRE - 1) * n
        elif c <= 5: w = n
        elif c == 6: w = n + 8
        else: w = 19
        a("s_waitcnt vmcnt(%d)" % w)
        if c == 7:
            lab = a.lab("L_ini")
            a("s_cmp_eq_u32 s%d, 0\ns_cbranch_scc0 %s_x" % (sLW, lab))
            a("s_mov_b32 s%d, 0" % sCNT)
            a("%s:" % lab)
            a("v_cmp_eq_u32 vcc, 1, v24\ns_cmp_eq_u64 vcc, -1\ns_cbranch_scc1 %s_x" % lab)
            a("s_add_u32 s%d, s%d, 1\ns_cmp_gt_u32 s%d, 100000\ns_cbranch_scc1 %s_x" % (sCNT, sCNT, sCNT, lab))
            a("buffer_load_dword v24, v25, s[%d:%d], 0 offen sc1\ns_waitcnt vmcnt(0)\ns_branch %s" % (sDBG, sDBG + 3, lab))
            a("%s_x:" % lab)
        a("s_barrier")
        if c == 0 and br == 0:
            lab = a.lab("L_ifl")
            a("s_cmp_eq_u32 s%d, 0\ns_cbranch_scc0 %s\ns_cmp_eq_u32 s%d, 0\ns_cbranch_scc0 %s" % (sRT, lab, sLW, lab))
            a("s_lshl_b32 s%d, s%d, 2\ns_add_u32 s%d, s%d, 128\nv_mov_b32 v16, s%d\nv_mov_b32 v17, 1" % (sT0, sHG, sT0, sT0, sT0))
            a("s_mov_b64 s[%d:%d], exec\ns_mov_b64 exec, 1" % (sSAVE, sSAVE + 1))
            a("buffer_store_dword v17, v16, s[%d:%d], 0 offen sc1" % (sDBG, sDBG + 3))
            a("s_mov_b64 exec, s[%d:%d]" % (sSAVE, sSAVE + 1))
            a("%s:" % lab)
        if c == 0:
            for cc in range(PRE, 3): chunk(cc)
        if 1 <= c <= 5: chunk(c + 2)
        if c == 5:
            lab = a.lab("L_dbg")
            a("s_cmp_eq_u32 s%d, 0\ns_cbranch_scc0 %s" % (sLW, lab))
            a("buffer_load_dword v24, v25, s[%d:%d], 0 offen sc1" % (sDBG, sDBG + 3))
            a("%s:" % lab)
            wo(24, 32)
        if c == 6: wo(13, 24)
        if c == 7: wo(0, 2)
    a("s_barrier")
    wo(2, 13)
    a("s_waitcnt vmcnt(0)")
    a("s_barrier")
    lab = a.lab("L_fl")
    a("s_cmp_eq_u32 s%d, 0\ns_cbranch_scc0 L_p2wait" % sLW)
    a("s_lshl_b32 s%d, s%d, 8\ns_lshl_b32 s%d, s%d, 2\ns_add_u32 s%d, s%d, s%d\ns_add_u32 s%d, s%d, %d" % (sT0, sRT, sT1, sHG, sT0, sT0, sT1, sT0, sT0, WS_FLAG + br * 4096))
    a("v_mov_b32 v16, s%d\nv_mov_b32 v17, 1" % sT0)
    a("s_mov_b64 s[%d:%d], exec\ns_mov_b64 exec, 1" % (sSAVE, sSAVE + 1))
    a("buffer_store_dword v17, v16, s[%d:%d], 0 offen sc1" % (sWS, sWS + 3))
    a("s_mov_b64 exec, s[%d:%d]" % (sSAVE, sSAVE + 1))
    a("s_waitcnt vmcnt(0)")
    stamp(6)
    a("s_mov_b32 s%d, 0" % sCNT)
    if br:
        a("s_lshr_b32 s%d, s%d, 1\ns_lshl_b32 s%d, s%d, 8\ns_add_u32 s%d, s%d, %d" % (sT0, sRB, sT0, sT0, sT0, sT0, WS_FLAG + 4096))
        a("v_and_b32 v16, 7, v0\nv_lshl_add_u32 v16, v16, 2, s%d" % sT0)
        a("%s:" % lab)
        a("buffer_load_dword v17, v16, s[%d:%d], 0 offen sc1\ns_waitcnt vmcnt(0)" % (sWS, sWS + 3))
        a("v_cmp_eq_u32 vcc, 1, v17")
    else:
        a("v_lshrrev_b32 v16, 3, v0\nv_lshlrev_b32 v16, 8, v16\nv_and_b32 v17, 7, v0\nv_lshl_add_u32 v16, v17, 2, v16")
        if WS_FLAG: a("v_add_u32 v16, %d, v16" % WS_FLAG)
        a("%s:" % lab)
        a("buffer_load_dword v17, v16, s[%d:%d], 0 offen sc1\nbuffer_load_dword v18, v16, s[%d:%d], 0 offen offset:2048 sc1\ns_waitcnt vmcnt(0)" % (sWS, sWS + 3, sWS, sWS + 3))
        a("v_and_b32 v17, v17, v18\nv_cmp_eq_u32 vcc, 1, v17")
    a("s_cmp_eq_u64 vcc, -1\ns_cbranch_scc1 L_p2wait")
    a("s_add_u32 s%d, s%d, 1\ns_cmp_gt_u32 s%d, 100000\ns_cbranch_scc1 L_p2wait" % (sCNT, sCNT, sCNT))
    if OPT["sleep"]: a("s_sleep %d" % OPT["sleep"])
    a("s_branch %s" % lab)

a("s_cmp_eq_u32 s%d, 0\ns_cbranch_scc0 L_loaderB" % sBR)
loader(0)
a("L_loaderB:")
loader(1)

a("L_p2wait:")
vA2 = 112
vOP2, vOUT, vRED = 120, 121, 122
aOP, aWO = 0, 32
vACC = 8
a("v_and_b32 v1, 15, v0\nv_lshrrev_b32 v2, 4, v0")
a("s_and_b32 s%d, s%d, 3\ns_lshr_b32 s%d, s%d, 2" % (sT0, sWAVE, sT1, sWAVE))
a("s_lshl_b32 s%d, s%d, 2\ns_add_u32 s%d, s%d, s%d\ns_lshl_b32 s%d, s%d, 14" % (sT2, sRB, sT2, sT2, sT0, sT2, sT2))
a("s_lshl_b32 s%d, s%d, 13\ns_add_u32 s%d, s%d, s%d\ns_lshl_b32 s%d, s%d, 21\ns_add_u32 s%d, s%d, s%d\ns_add_u32 s%d, s%d, 0x%x" % (sT3, sT1, sT2, sT2, sT3, sT3, sBR, sT2, sT2, sT3, sT2, sT2, WS_OP))
a("v_lshl_add_u32 v%d, v0, 4, s%d" % (vOP2, sT2))
a("v_bfe_u32 v3, v0, 2, 2\nv_and_b32 v4, 3, v0\nv_and_b32 v5, 1, v2")
a("v_lshl_or_b32 v6, v5, 2, v3\nv_lshlrev_b32 v6, 5, v6\nv_lshl_add_u32 v6, v4, 3, v6")
a("s_cmp_eq_u32 s%d, 0\ns_cbranch_scc1 L_rowA" % sBR)
a("v_lshrrev_b32 v7, 1, v2\nv_lshlrev_b32 v7, 3, v7\nv_lshl_add_u32 v7, v5, 4, v7\nv_add_u32 v7, v7, v3\ns_branch L_rowX")
a("L_rowA:\nv_lshl_add_u32 v7, v2, 2, v3\nL_rowX:")
a("v_lshl_add_u32 v6, v7, 8, v6")
a("s_lshl_b32 s%d, s%d, 16\ns_add_u32 s%d, s%d, %d\nv_add_u32 v6, s%d, v6" % (sT2, sT1, sT2, sT2, WO_BASE, sT2))
for c8 in range(8): a("v_xor_b32 v%d, %d, v6" % (vA2 + c8, c8 << 5))
a("s_lshl_b32 s%d, s%d, 6\ns_lshr_b32 s%d, s%d, 1\ns_lshl_b32 s%d, s%d, 5\ns_add_u32 s%d, s%d, s%d\ns_and_b32 s%d, s%d, 1\ns_add_u32 s%d, s%d, s%d" % (sT2, sRB, sT3, sT0, sT3, sT3, sT2, sT2, sT3, sT3, sT0, sT2, sT2, sT3))
a("s_lshl_b32 s%d, s%d, 11\ns_lshl_b32 s%d, s%d, 10\ns_add_u32 s%d, s%d, s%d\ns_lshl_b32 s%d, s%d, 8\ns_add_u32 s%d, s%d, s%d\ns_lshl_b32 s%d, s%d, 7\ns_add_u32 s%d, s%d, s%d" % (sT2, sT2, sT3, sBR, sT2, sT2, sT3, sT3, sCT, sT2, sT2, sT3, sT3, sT1, sT2, sT2, sT3))
a("v_lshlrev_b32 v3, 12, v1\nv_and_b32 v4, 1, v2\nv_lshl_add_u32 v3, v4, 5, v3\nv_lshrrev_b32 v4, 1, v2\nv_lshl_add_u32 v3, v4, 4, v3\nv_add_u32 v%d, s%d, v3" % (vOUT, sT2))
a("s_lshl_b32 s%d, s%d, 12\ns_add_u32 s%d, s%d, %d\nv_lshl_add_u32 v%d, v0, 4, s%d" % (sT2, sWAVE, sT2, sT2, WO_BASE, vRED, sT2))
a("v_xor_b32 v%d, 0x4000, v%d" % (vRED + 1, vRED))
a("s_movk_i32 s%d, 0x1000" % sT5)
a("s_barrier")
stamp(7)
for jj in range(8):
    a("buffer_load_dwordx4 %s, v%d, s[%d:%d], %s offen offset:%d sc1" % (ar(aOP + 4 * jj, 4), vOP2, sWS, sWS + 3, "0" if jj < 4 else "s%d" % sT5, (jj & 3) * 1024))
a("s_cmp_eq_u32 s%d, 0\ns_cbranch_scc1 L_p2A" % sBR)

def wo_reads(jj, rdstep):
    out = []
    for c8 in range(8):
        for rd in range(2):
            out.append("ds_read_b64_tr_b16 %s, v%d offset:%d" % (ar(aWO + 32 * (jj & 1) + 4 * c8 + 2 * rd, 2), vA2 + c8, jj * 8192 + rd * rdstep))
    return out

rds = wo_reads(0, 1024)
for x in rds: a(x)
for jj in range(8):
    nxt = wo_reads(jj + 1, 1024) if jj < 7 else []
    a("s_waitcnt vmcnt(%d)" % (7 - jj))
    for c8 in range(8):
        a("s_waitcnt lgkmcnt(%d)" % (14 if jj < 7 else 14 - 2 * c8))
        a("v_mfma_f32_16x16x32_bf16 %s, %s, %s, %s" % (vr(vACC + 4 * c8, 4), ar(aWO + 32 * (jj & 1) + 4 * c8, 4), ar(aOP + 4 * jj, 4), "0" if jj == 0 else vr(vACC + 4 * c8, 4)))
        for x in nxt[2 * c8:2 * c8 + 2]: a(x)
a("s_branch L_p2red")

a("L_p2A:")
vKL = 124
a("s_lshl_b32 s%d, s%d, 12\ns_add_u32 s%d, s%d, 0x%x\nv_lshl_add_u32 v3, v0, 2, s%d" % (sT2, sWAVE, sT2, sT2, WS_KV, sT2))
for i in range(16):
    a("buffer_load_dword v%d, v3, s[%d:%d], 0 offen offset:%d sc1" % (vKL + i, sWS, sWS + 3, i * 256))
a("s_lshl_b32 s%d, s%d, 8\ns_add_u32 s%d, s%d, 0x%x" % (sT2, sWAVE, sT2, sT2, WS_Z))
a("v_and_b32 v4, 1, v2\nv_lshlrev_b32 v5, 6, v4\nv_lshrrev_b32 v6, 1, v2\nv_lshl_add_u32 v5, v6, 5, v5\nv_add_u32 v5, s%d, v5" % sT2)
for j2 in range(2):
    for hf in range(2):
        a("buffer_load_dwordx4 %s, v5, s[%d:%d], 0 offen offset:%d sc1" % (vr(140 + 8 * j2 + 4 * hf, 4), sWS, sWS + 3, j2 * 128 + hf * 16))
vM0, vMZ = 156, 157
a("v_cmp_eq_u32 vcc, 0, v4\nv_cndmask_b32_e64 v%d, 0, -1, vcc" % vM0)
a("v_lshrrev_b32 v6, 3, v1\nv_cmp_eq_u32 vcc, v6, v4\nv_cndmask_b32_e64 v%d, 0, -1, vcc" % vMZ)
a("s_lshl_b32 s%d, s%d, 11\nv_lshl_add_u32 v7, v0, 4, s%d" % (sT2, sWAVE, sT2))
for x in wo_reads(0, 4096): a(x)
a("s_waitcnt vmcnt(0)")
for j2 in range(2):
    b = vKL + 8 * j2
    d = 40 + 8 * j2
    a("v_cvt_pk_bf16_f32 v%d, v%d, v%d\nv_cvt_pk_bf16_f32 v%d, v%d, v%d" % (d, b, b + 1, d + 1, b + 2, b + 3))
    a("v_cvt_pk_bf16_f32 v%d, v%d, v%d\nv_cvt_pk_bf16_f32 v%d, v%d, v%d" % (d + 2, b + 4, b + 5, d + 3, b + 6, b + 7))
    z = 140 + 8 * j2
    for i in range(4): a("v_cvt_pk_bf16_f32 v%d, v%d, v%d" % (d + 4 + i, z + 2 * i, z + 2 * i + 1))
    a("v_permlane16_swap_b32 v%d, v%d\nv_permlane16_swap_b32 v%d, v%d" % (d, d + 2, d + 1, d + 3))
    for i in range(4): a("v_and_b32 v%d, v%d, v%d" % (d + 4 + i, d + 4 + i, vMZ))
    a("ds_write_b128 v7, %s offset:%d" % (vr(d, 4), LDS_K + j2 * 1024))
    a("ds_write_b128 v7, %s offset:%d" % (vr(d + 4, 4), LDS_Z + j2 * 1024))
a("s_waitcnt lgkmcnt(0)")
a("s_barrier")
stamp(8)
a("s_lshr_b32 s%d, s%d, 2\ns_lshl_b32 s%d, s%d, 13\nv_lshl_add_u32 v7, v0, 4, s%d" % (sT2, sWAVE, sT2, sT2, sT2))
a("s_mov_b32 s%d, 0x%x" % (sC2, EPS))
vKF, vZF, vA0, vA1, vN0, vN1, vDN, vRV, vBOP = 40, 48, 56, 60, 64, 68, 72, 76, 80
def kz_reads(jj):
    return ["ds_read_b128 %s, v7 offset:%d" % (vr(vKF + 4 * (jj & 1), 4), LDS_K + jj * 1024),
            "ds_read_b128 %s, v7 offset:%d" % (vr(vZF + 4 * (jj & 1), 4), LDS_Z + jj * 1024)]
def ocalc(jj):
    kf, zf, bop = vKF + 4 * (jj & 1), vZF + 4 * (jj & 1), vBOP + 4 * (jj & 1)
    s = []
    for i in range(4): s.append("v_and_b32 v%d, v%d, v%d" % (vA0 + i, kf + i, vM0))
    s.append("v_mfma_f32_16x16x32_bf16 %s, %s, %s, 0" % (vr(vDN, 4), vr(zf, 4), ar(aOP + 4 * jj, 4)))
    for i in range(4): s.append("v_xor_b32 v%d, v%d, v%d" % (vA1 + i, kf + i, vA0 + i))
    s.append("v_mfma_f32_16x16x32_bf16 %s, %s, %s, 0" % (vr(vN0, 4), vr(vA0, 4), ar(aOP + 4 * jj, 4)))
    s.append("v_mfma_f32_16x16x32_bf16 %s, %s, %s, 0" % (vr(vN1, 4), vr(vA1, 4), ar(aOP + 4 * jj, 4)))
    s.append("v_add_f32 v%d, s%d, v%d" % (vRV, sC2, vDN))
    s.append("v_rcp_f32 v%d, v%d" % (vRV, vRV))
    s.append("v_mov_b32 v%d, v%d" % (vRV + 1, vRV))
    s.append("v_permlane32_swap_b32 v%d, v%d" % (vRV, vRV + 1))
    for r in range(4): s.append("v_mul_f32 v%d, v%d, v%d" % (vN0 + r, vN0 + r, vRV))
    for r in range(4): s.append("v_mul_f32 v%d, v%d, v%d" % (vN1 + r, vN1 + r, vRV + 1))
    s.append("v_cvt_pk_bf16_f32 v%d, v%d, v%d" % (bop, vN0, vN0 + 1))
    s.append("v_cvt_pk_bf16_f32 v%d, v%d, v%d" % (bop + 1, vN0 + 2, vN0 + 3))
    s.append("v_cvt_pk_bf16_f32 v%d, v%d, v%d" % (bop + 2, vN1, vN1 + 1))
    s.append("v_cvt_pk_bf16_f32 v%d, v%d, v%d" % (bop + 3, vN1 + 2, vN1 + 3))
    return s
for x in kz_reads(0) + kz_reads(1): a(x)
a("s_waitcnt lgkmcnt(0)")
for x in ocalc(0): a(x)
for jj in range(8):
    a("s_waitcnt lgkmcnt(0)")
    g = []
    nxt = (wo_reads(jj + 1, 4096) if jj < 7 else [])
    kz = kz_reads(jj + 2) if jj < 6 else []
    bop = vBOP + 4 * (jj & 1)
    mf = ["v_mfma_f32_16x16x32_bf16 %s, %s, %s, %s" % (vr(vACC + 4 * c8, 4), ar(aWO + 32 * (jj & 1) + 4 * c8, 4), vr(bop, 4), "0" if jj == 0 else vr(vACC + 4 * c8, 4)) for c8 in range(8)]
    oc = ocalc(jj + 1) if jj < 7 else []
    streams = [oc, mf, nxt + kz]
    for x in sched.interleave(streams, weights=[3, 1, 2]): a(x)

a("L_p2red:")
stamp(9)
a("s_barrier")
a("s_lshr_b32 s%d, s%d, 2" % (sT1, sWAVE))
a("s_cmp_eq_u32 s%d, 0\ns_cbranch_scc0 L_red1" % sT1)
def red(own, other):
    for i in range(4): a("ds_write_b128 v%d, %s offset:%d" % (vRED, vr(vACC + 4 * (other + i), 4), i * 1024))
    a("s_waitcnt lgkmcnt(0)")
    a("s_barrier")
    for i in range(4): a("ds_read_b128 %s, v%d offset:%d" % (vr(40 + 4 * i, 4), vRED + 1, i * 1024))
    for i in range(4):
        a("s_waitcnt lgkmcnt(%d)" % (3 - i))
        for r in range(4): a("v_add_f32 v%d, v%d, v%d" % (40 + 4 * i + r, 40 + 4 * i + r, vACC + 4 * (own + i) + r))
        a("v_cvt_pk_bf16_f32 v%d, v%d, v%d\nv_cvt_pk_bf16_f32 v%d, v%d, v%d" % (60 + 2 * i, 40 + 4 * i, 41 + 4 * i, 61 + 2 * i, 42 + 4 * i, 43 + 4 * i))
        if i & 1:
            b = 60 + 2 * (i - 1)
            a("v_permlane16_swap_b32 v%d, v%d\nv_permlane16_swap_b32 v%d, v%d" % (b, b + 2, b + 1, b + 3))
            a("buffer_store_dwordx4 %s, v%d, s[%d:%d], 0 offen offset:%d%s" % (vr(b, 4), vOUT, sOUT, sOUT + 3, (i >> 1) * 64, ["", " sc1", " nt", " sc0 sc1", " sc1 nt"][OPT.get("outst", 0)]))
red(0, 4)
a("s_branch L_fin")
a("L_red1:")
red(4, 0)
a("L_fin:")
if STAMPS:
    stamp(10)
    a("s_waitcnt vmcnt(0)")
    stamp(11)
    a("s_waitcnt lgkmcnt(0)")
    if STAMPS == 3:
        a("s_cmp_eq_u32 s2, %d\ns_cbranch_scc0 L_end\ns_cmp_eq_u32 s%d, 0\ns_cbranch_scc0 L_end" % (OPT.get("ampwg", 0), sWAVE))
        a("s_sub_u32 s%d, s%d, s%d\ns_mul_i32 s%d, s%d, %d" % (sT0, sSTB + 2 * OPT["ampb"], sSTB + 2 * OPT["ampa"], sT0, sT0, OPT["amp"]))
        a("s_add_u32 s%d, s%d, s%d" % (sT0, sT0, sSTB + 22))
        a("s_mov_b32 s%d, 0" % sCNT)
        a("L_amp:\ns_memrealtime s[%d:%d]\ns_waitcnt lgkmcnt(0)\ns_add_u32 s%d, s%d, 1\ns_cmp_gt_u32 s%d, 200000\ns_cbranch_scc1 L_end" % (sT2, sT3, sCNT, sCNT, sCNT))
        a("s_sub_u32 s%d, s%d, s%d\ns_cmp_lt_i32 s%d, 0\ns_cbranch_scc1 L_amp\ns_branch L_end" % (sT1, sT2, sT0, sT1))
    if STAMPS == 2:
        a("s_and_b32 s%d, s%d, 3\ns_cmp_eq_u32 s%d, 0\ns_cbranch_scc0 L_end" % (sT0, sWAVE, sT0))
        a("s_mov_b64 exec, 1")
        a("s_not_b32 s%d, s%d" % (sSTB, sSTB))
        for j in range(NSTAMP):
            a("v_mov_b32 v6, s%d\nv_mov_b32 v5, %d" % (sSTB + 2 * j, 4 * j))
            a("buffer_atomic_umax v6, v5, s[%d:%d], 0 offen sc1" % (sDBG, sDBG + 3))
        a("s_lshl_b32 s%d, s%d, 2\ns_add_u32 s%d, s%d, 48\nv_mov_b32 v5, s%d\nv_mov_b32 v6, s%d" % (sT0, sBR, sT0, sT0, sT0, sSTB + 22))
        a("buffer_atomic_umax v6, v5, s[%d:%d], 0 offen sc1" % (sDBG, sDBG + 3))
        a("s_branch L_end")
    a("s_and_b32 s%d, s%d, 3\ns_cmp_eq_u32 s%d, 0\ns_cbranch_scc0 L_end" % (sT0, sWAVE, sT0))
    a("s_lshr_b32 s%d, s%d, 2\ns_lshl_b32 s%d, s2, 1\ns_add_u32 s%d, s%d, s%d\ns_mul_i32 s%d, s%d, %d\ns_add_u32 s%d, s%d, 0x%x" % (sT0, sWAVE, sT1, sT0, sT0, sT1, sT0, sT0, NSTAMP * 8, sT0, sT0, WS_STAMP))
    a("v_mov_b32 v5, s%d" % sT0)
    for j in range(NSTAMP):
        a("v_mov_b32 v6, s%d\nv_mov_b32 v7, s%d" % (sSTB + 2 * j, sSTB + 2 * j + 1))
        a("buffer_store_dwordx2 v[6:7], v5, s[%d:%d], 0 offen offset:%d" % (sWS, sWS + 3, 8 * j))
a("L_end:\ns_endpgm")

body = a.finalize()
hdr = open("concat_heads__linear_attn_block__sliding_local_dilated__prompt.s.ref").read().split("; Override launch")[0]
txt = hdr + "; @launch grid=(256,1,1) block=(512,1,1) lds=%d\n" % LDS_BYTES
txt += '.amdgcn_target "amdgcn-amd-amdhsa--gfx950"\n.text\n.globl %s\n.p2align 8\n.type %s,@function\n%s:\n' % (KN, KN, KN)
txt += body
txt += ('.section .rodata,"a"\n.p2align 6\n.amdhsa_kernel %s\n  .amdhsa_next_free_vgpr 256\n  .amdhsa_next_free_sgpr 102\n'
        '  .amdhsa_accum_offset 160\n  .amdhsa_group_segment_fixed_size 0\n  .amdhsa_kernarg_size 72\n  .amdhsa_user_sgpr_count 2\n'
        '  .amdhsa_user_sgpr_kernarg_segment_ptr 1\n  .amdhsa_system_sgpr_workgroup_id_x 1\n  .amdhsa_float_denorm_mode_32 3\n.end_amdhsa_kernel\n') % KN
open(sys.argv[1], "w").write(txt)
print("instructions:", a.count)
```

```python
from isa import Ins, TRANS

class St:
    def __init__(self):
        self.pos = 0; self.w_valu = {}; self.w_trans = {}; self.w_mfma = {}; self.r_c = {}
    def need(self, I):
        need = 0
        def req(t, n):
            nonlocal need
            need = max(need, n - (self.pos - t - 1))
        if I.kind == "mfma":
            for r in I.rd:
                if r in self.w_valu: req(self.w_valu[r], 2)
            for r in I.rdA:
                if r in self.w_mfma: req(self.w_mfma[r], 8)
            for r in I.rdC:
                if r in self.w_mfma and r not in I.wr: req(self.w_mfma[r], 6)
        elif I.kind == "valu":
            for r in I.rd + I.wr:
                if r in self.w_mfma: req(self.w_mfma[r], 8)
            for r in I.wr:
                if r in self.r_c: req(self.r_c[r], 3)
            if I.mn.startswith("v_permlane"):
                for r in I.rd:
                    if r in self.w_valu: req(self.w_valu[r], 2)
            for r in I.rd:
                if r in self.w_trans: req(self.w_trans[r], 1)
        return need
    def commit(self, I):
        self.pos += max(0, self.need(I))
        t = self.pos
        if I.kind == "mfma":
            for r in I.wr: self.w_mfma[r] = t; self.w_valu.pop(r, None)
            for r in I.rdC: self.r_c[r] = t
        elif I.kind == "valu":
            for r in I.wr:
                self.w_valu[r] = t; self.w_mfma.pop(r, None); self.w_trans.pop(r, None)
                if I.mn.startswith(TRANS): self.w_trans[r] = t
        self.pos += I.nstates

def interleave(streams, weights=None):
    S = [[Ins(x) for x in s] for s in streams]
    idx = [0] * len(S)
    st = St()
    out = []
    weights = weights or [1] * len(S)
    order = [i for i, w in enumerate(weights) for _ in range(w)]
    tot = sum(weights)
    order = sorted(range(tot), key=lambda k: 0)
    seq = []
    acc = [0.0] * len(S)
    for _ in range(tot):
        for i in range(len(S)): acc[i] += weights[i] / tot
        b = max(range(len(S)), key=lambda i: acc[i]); acc[b] -= 1; seq.append(b)
    p = 0
    while any(idx[i] < len(S[i]) for i in range(len(S))):
        best = None
        for k in range(tot):
            i = seq[(p + k) % tot]
            if idx[i] >= len(S[i]): continue
            n = st.need(S[i][idx[i]])
            if best is None or n < best[0]: best = (n, i, k)
            if n <= 0: break
        n, i, k = best
        I = S[i][idx[i]]; idx[i] += 1
        st.commit(I); out.append(I.text)
        p = (p + k + 1) % tot
    return out

class DsQueue:
    def __init__(self, emit):
        self.emit = emit
        self.q = []
    def __call__(self, text):
        I = Ins(text)
        touched = set(I.rd) | set(I.wr)
        last = -1
        for i, d in enumerate(self.q):
            if d and (d & touched): last = i
        if last >= 0:
            n = len(self.q) - 1 - last
            self.emit("s_waitcnt lgkmcnt(%d)" % min(n, 15))
            n = min(n, 15)
            del self.q[:len(self.q) - n]
        self.emit(text)
        if I.kind == "ds":
            self.q.append(set(I.wr) if I.wr else None)
    def drain(self):
        if self.q: self.emit("s_waitcnt lgkmcnt(0)")
        self.q = []
```

```python
import sys
from isa import Asm, Ins
import sched

KN = "concat_heads__linear_attn_block__sliding_local_dilated__prompt_kernel"
OPT = dict(stamps=0, rot=1, stop=99, prio=0, sleep=4, touch=0, pre=2, pace=1)
for x in sys.argv[2:]:
    k, v = x.split("="); OPT[k] = int(v)
STAMPS = OPT["stamps"]
NTW = " nt" if OPT.get("ntw", 0) else ""
NTX = " nt" if OPT.get("ntx", 0) else ""
ATOM = " sc1" if OPT.get("atomsc1", 1) else ""

WS_FLAG = 0x0
WS_KV = 0x4000
WS_Z = 0xC000
WS_OP = 0x100000
WS_STAMP = 128 << 20
WS_BYTES = 268435456
SLOT = 43008
WOFF = 18432
WO_BASE = 32768
LDS_K = 0
LDS_Z = 16384
LDS_BYTES = 163840
BIG = 0xf149f2ca
EPS = 0x358637bd
LOG2E = 0x3fb8aa3b
NEG_EPS_LOG2E = 0xb5c1a4b9
import struct
def f2u(f): return struct.unpack("<I", struct.pack("<f", f))[0]
import math
LOG2E = f2u(math.log2(math.e)); EPS = f2u(1e-6); BIG = f2u(-1e30)
NEG_EPS_LOG2E = f2u(-1e-6 * math.log2(math.e))
SCALE_C = f2u(0.25 * math.log2(math.e))

sX, sW, sWO, sOUT, sWS, sDBG = 20, 24, 28, 32, 36, 40
sBR, sRT, sHG, sWAVE, sRB, sCT, sLW, sROT = 44, 45, 46, 47, 48, 49, 50, 51
sT0, sT1, sT2, sT3, sT4, sT5 = 52, 53, 54, 55, 56, 57
sX0, sX1, sH, sW0, sW1, sW2, sKC = 58, 59, 60, 61, 62, 63, 64
sM, sCNT, sSAVE = 65, 66, 68
sC0, sC1, sC2, sC3 = 70, 71, 72, 73
sSTB = 76
NSTAMP = 12

a = Asm()

def stamp(i, force=False):
    if OPT.get("bst", 0) and i >= 3 and not force: return
    if STAMPS:
        if OPT.get("clk", 0):
            a("s_memtime s[%d:%d]" % (sSTB + 2 * i, sSTB + 2 * i + 1))
        else:
            a("s_memrealtime s[%d:%d]" % (sSTB + 2 * i, sSTB + 2 * i + 1))

def stamp_wait():
    if STAMPS:
        a("s_waitcnt lgkmcnt(0)")

def srd(d, base, nbytes):
    a("s_mov_b32 s%d, s%d\ns_and_b32 s%d, s%d, 0xffff\ns_mov_b32 s%d, 0x%x\ns_mov_b32 s%d, 0x00020000" % (d, base, d + 1, base + 1, d + 2, nbytes, d + 3))

def vr(b, n=1):
    return "v%d" % b if n == 1 else "v[%d:%d]" % (b, b + n - 1)
def ar(b, n=1):
    return "a%d" % b if n == 1 else "a[%d:%d]" % (b, b + n - 1)

a("s_cmp_ge_u32 s2, 256\ns_cbranch_scc1 L_end")
if STAMPS:
    for i in range(2 * NSTAMP): a("s_mov_b32 s%d, 0" % (sSTB + i))
stamp(0)
a("s_and_b32 s%d, s2, 7" % sT0)
a("s_lshr_b32 s%d, s2, 3" % sT1)
a("s_lshr_b32 s%d, s%d, 2" % (sBR, sT0))
a("s_mul_i32 s%d, s%d, 24" % (sT2, sBR))
a("s_add_u32 s18, s0, s%d\ns_addc_u32 s19, s1, 0" % sT2)
a("s_load_dwordx4 s[4:7], s[18:19], 0")
a("s_load_dwordx2 s[8:9], s[18:19], 16")
a("s_load_dwordx4 s[12:15], s[0:1], 48")
a("s_load_dwordx2 s[16:17], s[0:1], 64")
a("v_lshrrev_b32 v1, 6, v0\nv_and_b32 v0, 63, v0")
a("s_and_b32 s%d, s%d, 1\ns_lshl_b32 s%d, s%d, 3\ns_and_b32 s%d, s%d, 7\ns_add_u32 s%d, s%d, s%d" % (sT2, sT0, sT2, sT2, sT3, sT1, sRT, sT2, sT3))
a("v_readfirstlane_b32 s%d, v1" % sWAVE)
a("s_lshr_b32 s%d, s%d, 1\ns_and_b32 s%d, s%d, 1\ns_lshl_b32 s%d, s%d, 2\ns_lshr_b32 s%d, s%d, 3\ns_add_u32 s%d, s%d, s%d" % (sT2, sT0, sT2, sT2, sT2, sT2, sT4, sT1, sHG, sT2, sT4))
a("s_and_b32 s%d, s%d, 3\ns_lshl_b32 s%d, s%d, 3\ns_lshr_b32 s%d, s%d, 2\ns_add_u32 s%d, s%d, s%d" % (sT2, sT0, sT2, sT2, sT5, sT1, sRB, sT2, sT5))
a("s_and_b32 s%d, s%d, 3" % (sCT, sT1))
if OPT["rot"] == 1:
    a("s_lshl_b32 s%d, s%d, 1\ns_add_u32 s%d, s%d, s%d\ns_and_b32 s%d, s%d, 7" % (sROT, sT4, sROT, sROT, sT3, sROT, sROT))
elif OPT["rot"] == 2:
    a("s_and_b32 s%d, s%d, 1\ns_lshl_b32 s%d, s%d, 2" % (sROT, sT3, sROT, sROT))
else:
    a("s_mov_b32 s%d, 0" % sROT)
a("s_and_b32 s%d, s%d, 3" % (sLW, sWAVE))
a("s_waitcnt lgkmcnt(0)")
stamp(1)
srd(sX, 4, 2048 * 1024)
srd(sW, 6, 512 * 3072)
srd(sWO, 8, 512 * 1024)
srd(sOUT, 12, 2048 * 2048)
srd(sDBG, 14, 256)
srd(sWS, 16, WS_BYTES)
a("s_cmp_ge_u32 s%d, 4\ns_cbranch_scc1 L_loader" % sWAVE)

vQ, vK, vKH, vV, vVH = 8, 40, 72, 76, 108
vXR = 112
vWR = 118
vB = 121
vBC, vBP, vBH0, vBH1, vMC = 122, 126, 130, 134, 138
vTMP = 140
aXF, aWF = 0, 36

if OPT.get("touch", 1):
    a("s_lshr_b32 s%d, s2, 3\ns_and_b32 s%d, s%d, 7\ns_lshr_b32 s%d, s%d, 3" % (sT0, sT1, sT0, sT2, sT0))
    a("v_lshrrev_b32 v1, 5, v0\nv_and_b32 v2, 31, v0")
    a("s_lshl_b32 s%d, s%d, 1\ns_add_u32 s%d, s%d, %d\ns_add_u32 s%d, s%d, s%d" % (sT3, sWAVE, sT3, sT3, OPT.get("t0", 1), sT3, sT3, sROT))
    a("v_add_u32 v3, s%d, v1\nv_and_b32 v3, 7, v3" % sT3)
    a("s_lshl_b32 s%d, s%d, 7\ns_lshl_b32 s%d, s%d, 5\ns_add_u32 s%d, s%d, s%d" % (sT4, sRT, sT5, sT2, sT4, sT4, sT5))
    a("v_add_u32 v4, s%d, v2\nv_lshlrev_b32 v4, 10, v4\nv_lshl_add_u32 v4, v3, 7, v4" % sT4)
    a("s_mul_i32 s%d, s%d, 24\nv_min_u32 v5, 23, v2\nv_add_u32 v5, s%d, v5" % (sT4, sT1, sT4))
    a("v_and_b32 v6, 63, v5\nv_lshl_add_u32 v6, v3, 6, v6\nv_mul_u32_u24 v6, 3072, v6\nv_lshrrev_b32 v5, 6, v5\nv_lshl_add_u32 v6, v5, 10, v6")
    a("s_lshl_b32 s%d, s%d, 7\nv_add_u32 v159, s%d, v6\nv_mov_b32 v158, v4" % (sT4, sHG, sT4))
TP = [OPT.get("tp0", 0), OPT.get("tp1", 0), OPT.get("tp2", 0), OPT.get("tp3", 0)]
def touch_at(point):
    if not OPT.get("touch", 1): return
    ws_ = [w for w in range(4) if TP[w] == point]
    if not ws_: return
    lab = a.lab("L_tch")
    if len(ws_) < 4:
        mask = sum(1 << w for w in ws_)
        a("s_lshl_b32 s%d, 1, s%d\ns_and_b32 s%d, s%d, %d\ns_cbranch_scc0 %s" % (sT0, sWAVE, sT0, sT0, mask, lab))
    a("buffer_load_dword v156, v158, s[%d:%d], 0 offen" % (sX, sX + 3))
    a("buffer_load_dword v157, v159, s[%d:%d], 0 offen" % (sW, sW + 3))
    a("%s:" % lab)
def wo_touch(point):
    if point != OPT.get("wotp", 3): return
    lab = a.lab("L_wot")
    a("s_cmp_ge_u32 s%d, 2\ns_cbranch_scc1 %s" % (sWAVE, lab))
    a("s_lshr_b32 s%d, s2, 3\ns_lshl_b32 s%d, s%d, 14\ns_lshl_b32 s%d, s%d, 13\ns_add_u32 s%d, s%d, s%d" % (sT0, sT0, sT0, sT1, sWAVE, sT0, sT0, sT1))
    a("v_lshlrev_b32 v154, 7, v0\nv_add_u32 v154, s%d, v154" % sT0)
    a("buffer_load_dword v155, v154, s[%d:%d], 0 offen" % (sWO, sWO + 3))
    a("%s:" % lab)
if OPT.get("pace", 1): a("s_barrier")
touch_at(0)
if OPT.get("pace", 1) >= 2: a("s_barrier")
a("v_and_b32 v1, 15, v0\nv_lshrrev_b32 v2, 4, v0")
a("v_lshrrev_b32 v3, 1, v1")
a("v_xor_b32 v4, v3, v2")
a("v_lshlrev_b32 v5, 7, v1\nv_lshl_add_u32 v5, v4, 4, v5")
for s_ in range(3):
    a("v_add_u32 v%d, %d, v5" % (vXR + 2 * s_, s_ * SLOT))
    a("v_xor_b32 v%d, 64, v%d" % (vXR + 2 * s_ + 1, vXR + 2 * s_))
a("v_bfe_u32 v3, v0, 2, 2\nv_and_b32 v4, 3, v0")
a("v_lshl_add_u32 v5, v2, 3, v3\nv_lshlrev_b32 v5, 7, v5")
a("v_lshrrev_b32 v6, 1, v3\nv_and_b32 v7, 1, v2\nv_lshl_or_b32 v6, v7, 1, v6")
a("v_xor_b32 v6, s%d, v6" % sWAVE)
a("v_lshl_add_u32 v5, v6, 5, v5\nv_lshl_add_u32 v5, v4, 3, v5")
for s_ in range(3):
    a("v_add_u32 v%d, %d, v5" % (vWR + s_, s_ * SLOT + WOFF))
a("s_cmp_eq_u32 s%d, 0\ns_cbranch_scc0 L_mainB" % sBR)

def c_of(step): return step >> 1
def main_loop(br):
    NT = 9 if br else 8
    lg = []
    def rd_x(step, t):
        c, st = step >> 1, step & 1
        s_ = c % 3
        a("ds_read_b128 %s, v%d offset:%d" % (ar(aXF + 4 * t, 4), vXR + 2 * s_ + st, t * 2048)); lg.append(("x", step, t))
    def rd_w(step, i):
        c, st = step >> 1, step & 1
        s_ = c % 3
        part, rd = i >> 1, i & 1
        a("ds_read_b64_tr_b16 %s, v%d offset:%d" % (ar(aWF + 12 * (step & 1) + 4 * part + 2 * rd, 2), vWR + s_, part * 8192 + st * 4096 + rd * 512)); lg.append(("w", step, i))
    def need(keys):
        last = -1
        for i, k in enumerate(lg):
            if k in keys: last = i
        if last >= 0:
            n = len(lg) - 1 - last
            a("s_waitcnt lgkmcnt(%d)" % min(n, 15))
            if n > 15: n = 15
            del lg[:len(lg) - n]
    a("s_barrier")
    stamp(2)
    touch_at(1)
    for i in range(6): rd_w(0, i)
    for t in range(NT): rd_x(0, t)
    for step in range(16):
        st = step & 1
        last = step == 15
        pend = []
        if not last:
            pend = [("w", i) for i in range(6)]
        deferred = []
        for t in range(NT):
            keys = [("x", step, t)]
            if t == 0: keys += [("w", step, i) for i in range(6)]
            need(keys)
            wb = aWF + 12 * (step & 1)
            xf = ar(aXF + 4 * t, 4)
            def cop(acc, eps):
                if step == 0: return vr(vTMP, 4) if eps else "0"
                return vr(acc, 4)
            if t < 8:
                a("v_mfma_f32_16x16x32_bf16 %s, %s, %s, %s" % (vr(vQ + 4 * t, 4), ar(wb, 4), xf, cop(vQ + 4 * t, br == 0)))
                kacc, vacc = vK + 4 * t, vV + 4 * t
            else:
                kacc, vacc = vKH, vVH
            if br:
                a("v_mfma_f32_16x16x32_bf16 %s, %s, %s, %s" % (vr(kacc, 4), ar(wb + 4, 4), xf, cop(kacc, False)))
            else:
                a("v_mfma_f32_16x16x32_bf16 %s, %s, %s, %s" % (vr(kacc, 4), xf, ar(wb + 4, 4), cop(kacc, True)))
            a("v_mfma_f32_16x16x32_bf16 %s, %s, %s, %s" % (vr(vacc, 4), xf, ar(wb + 8, 4), cop(vacc, False)))
            if st == 1 and t <= 2:
                if not last: deferred.append(("x", t))
                if t == 2:
                    a("s_waitcnt lgkmcnt(0)"); del lg[:]
                    a("s_barrier")
                    touch_at(c_of(step) + 2)
                    wo_touch(c_of(step) + 2)
                    if OPT.get("bst", 0): stamp(3 + c_of(step), True)
                    pend = pend + deferred if not last else []
                    if not last:
                        k = 0
                        while k < 3 and pend:
                            kind, i = pend.pop(0); rd_w(step + 1, i) if kind == "w" else rd_x(step + 1, i); k += 1
                continue
            if last: continue
            npend = 2
            if st == 1:
                pend.append(("x", t))
                k = 0
                while k < 3 and pend:
                    kind, i = pend.pop(0); rd_w(step + 1, i) if kind == "w" else rd_x(step + 1, i); k += 1
            else:
                rd_x(step + 1, t)
                k = 0
                while k < npend and pend:
                    kind, i = pend.pop(0); rd_w(step + 1, i); k += 1
        while pend:
            kind, i = pend.pop(0); rd_w(step + 1, i) if kind == "w" else rd_x(step + 1, i)
    a("s_waitcnt vmcnt(0)")
    stamp(3)
    if OPT.get("bst", 0): stamp(11, True)

def store_op(base0, npairs, first_pair=0):
    pass

def op_store_addr(vd):
    a("v_and_b32 v3, 1, v2\nv_lshlrev_b32 v3, 14, v3")
    a("v_lshrrev_b32 v4, 1, v2\nv_lshl_add_u32 v3, v4, 9, v3\nv_lshl_add_u32 v3, v1, 4, v3")
    a("s_lshl_b32 s%d, s%d, 17" % (sT0, sRT))
    a("s_lshl_b32 s%d, s%d, 11\ns_add_u32 s%d, s%d, s%d" % (sT1, sHG, sT0, sT0, sT1))
    a("s_lshr_b32 s%d, s%d, 1\ns_lshl_b32 s%d, s%d, 10\ns_add_u32 s%d, s%d, s%d" % (sT1, sWAVE, sT1, sT1, sT0, sT0, sT1))
    a("s_and_b32 s%d, s%d, 1\ns_lshl_b32 s%d, s%d, 8\ns_add_u32 s%d, s%d, s%d" % (sT1, sWAVE, sT1, sT1, sT0, sT0, sT1))
    a("s_lshl_b32 s%d, s%d, 21\ns_add_u32 s%d, s%d, s%d\ns_add_u32 s%d, s%d, 0x%x" % (sT1, sBR, sT0, sT0, sT1, sT0, sT0, WS_OP))
    a("v_add_u32 v%d, s%d, v3" % (vd, sT0))

vOPA = 7
vKVA = 6

a("L_mainA:")
a("v_mov_b32 v%d, 0x%x" % (vTMP, EPS))
for i in range(1, 4): a("v_mov_b32 v%d, v%d" % (vTMP + i, vTMP))
op_store_addr(vOPA)
a("s_lshl_b32 s%d, s%d, 2\ns_add_u32 s%d, s%d, s%d" % (sT0, sHG, sT0, sT0, sWAVE))
a("s_lshl_b32 s%d, s%d, 10\ns_add_u32 s%d, s%d, 0x%x" % (sT1, sT0, sT1, sT1, WS_KV))
a("v_lshl_add_u32 v%d, v0, 2, s%d" % (vKVA, sT1))
a("s_lshl_b32 s%d, s%d, 6\ns_add_u32 s%d, s%d, 0x%x" % (sT1, sT0, sT1, sT1, WS_Z))
a("v_lshl_add_u32 v5, v0, 2, s%d" % sT1)
a("s_mov_b32 s%d, 0x%x\ns_mov_b32 s%d, 0x%x\ns_mov_b32 s%d, 0x%x\ns_mov_b32 s%d, 0x%x" % (sC0, LOG2E, sC1, LOG2E, sC2, EPS, sC3, NEG_EPS_LOG2E))
main_loop(0)

def phi_stream(r0, dst, t0, t1):
    s = []
    for i in (0, 2):
        s.append("v_pk_fma_f32 v[%d:%d], v[%d:%d], s[%d:%d], v[2:3]" % (t0 + i, t0 + i + 1, r0 + i, r0 + i + 1, sC0, sC0 + 1))
    for i in range(4):
        s.append("v_exp_f32_e64 v%d, v%d clamp" % (t0 + i, t0 + i))
    for i in range(4):
        s.append("v_max_f32 v%d, s%d, v%d" % (r0 + i, sC2, r0 + i))
    for i in (0, 2):
        s.append("v_pk_add_f32 v[%d:%d], v[%d:%d], v[%d:%d]" % (r0 + i, r0 + i + 1, r0 + i, r0 + i + 1, t0 + i, t0 + i + 1))
    s.append("v_cvt_pk_bf16_f32 v%d, v%d, v%d" % (dst, r0, r0 + 1))
    s.append("v_cvt_pk_bf16_f32 v%d, v%d, v%d" % (dst + 1, r0 + 2, r0 + 3))
    return s

a("v_mov_b32 v2, s%d\nv_mov_b32 v3, s%d" % (sC3, sC3))
vKP, vVP, vQP = 112, 128, 144
ONES = 72
for i in range(4): a("v_mov_b32 v%d, 0x3f803f80" % (ONES + i))
TQ = [108, 72 + 0]
streams = []
tq = [160 - 0]
for t in range(0, 8, 2):
    s0 = phi_stream(vK + 4 * t, vKP + 2 * t, 108, None)
    s1 = phi_stream(vK + 4 * (t + 1), vKP + 2 * (t + 1), 144, None)
    sv = ["v_cvt_pk_bf16_f32 v%d, v%d, v%d" % (vVP + 2 * tt + i, vV + 4 * tt + 2 * i, vV + 4 * tt + 2 * i + 1) for tt in (t, t + 1) for i in range(2)]
    for x in sched.interleave([s0, s1, sv]): a(x)
    acc_kv, acc_z = 76, 80
    cop = lambda r: "0" if t == 0 else vr(r, 4)
    a("v_mfma_f32_16x16x32_bf16 %s, %s, %s, %s" % (vr(acc_kv, 4), vr(vKP + 2 * t, 4), vr(vVP + 2 * t, 4), cop(acc_kv)))
    a("v_mfma_f32_16x16x32_bf16 %s, %s, %s, %s" % (vr(acc_z, 4), vr(ONES, 4), vr(vKP + 2 * t, 4), cop(acc_z)))
stamp(4)
for r in range(4):
    a("buffer_atomic_add_f32 v%d, v%d, s[%d:%d], 0 offen offset:%d%s" % (76 + r, vKVA, sWS, sWS + 3, r * 256, ATOM))
a("s_mov_b64 s[%d:%d], exec\ns_mov_b64 exec, 0xffff" % (sSAVE, sSAVE + 1))
a("buffer_atomic_add_f32 v80, v5, s[%d:%d], 0 offen%s" % (sWS, sWS + 3, ATOM))
a("s_mov_b64 exec, s[%d:%d]" % (sSAVE, sSAVE + 1))
for t in range(0, 8, 2):
    s0 = phi_stream(vQ + 4 * t, vQP + 2 * t, 108, None)
    s1 = phi_stream(vQ + 4 * (t + 1), vQP + 2 * (t + 1), 84, None)
    for x in sched.interleave([s0, s1]): a(x)
stamp(5)
a("v_lshrrev_b32 v2, 4, v0\nv_lshlrev_b32 v2, 4, v2")
a("s_lshl_b32 s%d, s%d, 2\ns_add_u32 s%d, s%d, s%d\ns_lshl_b32 s%d, s%d, 6\ns_add_u32 s%d, s%d, 0x%x\nv_add_u32 v5, s%d, v2" % (sT0, sHG, sT0, sT0, sWAVE, sT0, sT0, sT0, sT0, WS_Z, sT0))
a("s_mov_b32 s%d, 0x%x" % (sC2, EPS))
a("s_waitcnt vmcnt(0)")
a("s_barrier")
a("s_barrier")
stamp(8)
for r in range(4):
    a("buffer_load_dword v%d, v%d, s[%d:%d], 0 offen offset:%d sc1" % (8 + r, vKVA, sWS, sWS + 3, r * 256))
a("buffer_load_dwordx4 v[12:15], v5, s[%d:%d], 0 offen sc1" % (sWS, sWS + 3))
a("s_waitcnt vmcnt(1)")
a("v_cvt_pk_bf16_f32 v16, v8, v9\nv_cvt_pk_bf16_f32 v17, v10, v11")
a("s_waitcnt vmcnt(0)")
a("v_cvt_pk_bf16_f32 v18, v12, v13\nv_cvt_pk_bf16_f32 v19, v14, v15")
stamp(6)
def ounit(t, T):
    N, DN, rv = T, T + 4, T + 8
    q = vQP + 2 * t
    s = []
    s.append("v_mfma_f32_16x16x16_bf16 %s, v[18:19], %s, 0" % (vr(DN, 4), vr(q, 2)))
    s.append("v_mfma_f32_16x16x16_bf16 %s, v[16:17], %s, 0" % (vr(N, 4), vr(q, 2)))
    s.append("v_add_f32 v%d, s%d, v%d" % (rv, sC2, DN))
    s.append("v_rcp_f32 v%d, v%d" % (rv, rv))
    for r in (0, 2): s.append("v_pk_mul_f32 v[%d:%d], v[%d:%d], v[%d:%d] op_sel_hi:[1,0]" % (N + r, N + r + 1, N + r, N + r + 1, rv, rv + 1))
    s.append("v_cvt_pk_bf16_f32 v%d, v%d, v%d" % (q, N, N + 1))
    s.append("v_cvt_pk_bf16_f32 v%d, v%d, v%d" % (q + 1, N + 2, N + 3))
    return s
for grp in range(2):
    for x in sched.interleave([ounit(4 * grp + i, 24 + 10 * i) for i in range(4)]): a(x)
    for u in (2 * grp, 2 * grp + 1):
        b = vQP + 4 * u
        a("v_permlane16_swap_b32 v%d, v%d\nv_permlane16_swap_b32 v%d, v%d" % (b, b + 2, b + 1, b + 3))
        a("s_mov_b32 s%d, %d" % (sT0, 2 * u * 16384))
        a("buffer_store_dwordx4 %s, v%d, s[%d:%d], s%d offen sc1" % (vr(b, 4), vOPA, sWS, sWS + 3, sT0))
stamp(4, False) if False else None
a("s_waitcnt vmcnt(0)")
a("s_barrier")
a("s_branch L_p2wait")

a("L_mainB:")
op_store_addr(vOPA)
a("v_lshlrev_b32 v3, 2, v2")
a("v_mov_b32 v6, 0x%x" % BIG)
for r in range(4):
    a("v_add_u32 v4, %d, v3" % r)
    a("v_sub_u32 v5, v1, v4")
    a("v_cmp_gt_u32 vcc, 8, v5")
    a("v_cndmask_b32_e64 v%d, v6, 0, vcc" % (vBC + r))
    if r % 2 == 0:
        a("v_cndmask_b32_e64 v%d, 0, -1, vcc\nv_and_b32 v%d, 0xffff, v%d" % (vMC + r // 2, vMC + r // 2, vMC + r // 2))
    else:
        a("v_cndmask_b32_e64 v5, 0, -1, vcc\nv_and_b32 v5, 0xffff0000, v5\nv_or_b32 v%d, v%d, v5" % (vMC + r // 2, vMC + r // 2))
    a("v_sub_u32 v5, v4, v1")
    a("v_cmp_le_i32 vcc, 9, v5")
    a("v_cndmask_b32_e64 v%d, v6, 0, vcc" % (vBP + r))
    a("v_cmp_le_i32 vcc, 1, v5\nv_cndmask_b32_e64 v%d, v6, 0, vcc" % (vBH0 + r))
    a("v_cmp_ge_u32 vcc, 7, v4\nv_cndmask_b32_e64 v%d, v6, v%d, vcc" % (vBH0 + r, vBH0 + r))
    a("v_mov_b32 v%d, v%d" % (vBH1 + r, vBP + r))
a("s_cmp_eq_u32 s%d, 0\ns_cbranch_scc0 L_nomask" % sRT)
for r in range(4):
    a("v_mov_b32 v%d, v6\nv_mov_b32 v%d, v6" % (vBH0 + r, vBH1 + r))
a("L_nomask:")
a("s_mov_b32 s%d, 0x%x\ns_mov_b32 s%d, 0x%x" % (sC0, SCALE_C, sC1, SCALE_C))
main_loop(1)
vVP = 140; vKPb = 76; vQPb = 94
def VP(p, u): return vVP + 10 * p + 2 * (u + 1)
def KP(t): return vKPb + 2 * t
def QP(t): return vQPb + 2 * t
pk = lambda d, s: ["v_cvt_pk_bf16_f32 v%d, v%d, v%d" % (d, s, s + 1), "v_cvt_pk_bf16_f32 v%d, v%d, v%d" % (d + 1, s + 2, s + 3)]
for t in range(8):
    for x in pk(VP(t & 1, t >> 1), vV + 4 * t): a(x)
for x in pk(VP(0, -1), vVH): a(x)
a("v_mov_b32 v%d, v%d\nv_mov_b32 v%d, v%d" % (VP(1, -1), VP(0, -1), VP(1, -1) + 1, VP(0, -1) + 1))
for t in range(8):
    for x in pk(KP(t), vK + 4 * t): a(x)
for x in pk(KP(8), vKH): a(x)
for t in range(8):
    for x in pk(QP(t), vQ + 4 * t): a(x)
ONESB = 110
ONESB = 112
for i in range(4): a("v_mov_b32 v%d, 0x3f803f80" % (ONESB + i))
def unit(t, T):
    p, u = t & 1, t >> 1
    SP, SC, SM, m0, m1 = T, T + 4, T + 8, T + 12, T + 13
    tp = 8 if u == 0 else t - 2
    bias = (vBH0 if p == 0 else vBH1) if u == 0 else vBP
    s = []
    s.append("v_mfma_f32_16x16x16_bf16 %s, %s, %s, %s" % (vr(SP, 4), vr(KP(tp), 2), vr(QP(t), 2), vr(bias, 4)))
    s.append("v_mfma_f32_16x16x16_bf16 %s, %s, %s, %s" % (vr(SC, 4), vr(KP(t), 2), vr(QP(t), 2), vr(vBC, 4)))
    for r in range(4): s.append("v_max_f32 v%d, v%d, v%d" % (SC + r, SC + r, SP + r))
    s.append("v_max3_f32 v%d, v%d, v%d, v%d" % (m0, SC, SC + 1, SC + 2))
    s.append("v_max_f32 v%d, v%d, v%d" % (m0, m0, SC + 3))
    s.append("v_mov_b32 v%d, v%d" % (m1, m0))
    s.append("v_permlane16_swap_b32 v%d, v%d" % (m0, m1))
    s.append("v_max_f32 v%d, v%d, v%d" % (m0, m0, m1))
    s.append("v_mov_b32 v%d, v%d" % (m1, m0))
    s.append("v_permlane32_swap_b32 v%d, v%d" % (m0, m1))
    s.append("v_max_f32 v%d, v%d, v%d" % (m0, m0, m1))
    s.append("v_mul_f32 v%d, s%d, v%d" % (m0, sC0, m0))
    for r in (0, 2): s.append("v_pk_fma_f32 v[%d:%d], v[%d:%d], s[%d:%d], v[%d:%d] op_sel_hi:[1,1,0] neg_lo:[0,0,1] neg_hi:[0,0,1]" % (SC + r, SC + r + 1, SC + r, SC + r + 1, sC0, sC0 + 1, m0, m0 + 1))
    for r in range(4): s.append("v_exp_f32 v%d, v%d" % (SC + r, SC + r))
    s.append("v_cvt_pk_bf16_f32 v%d, v%d, v%d" % (SC, SC, SC + 1))
    s.append("v_cvt_pk_bf16_f32 v%d, v%d, v%d" % (SC + 1, SC + 2, SC + 3))
    s.append("v_and_b32 v%d, v%d, v%d" % (SP + 2, SC, vMC))
    s.append("v_and_b32 v%d, v%d, v%d" % (SP + 3, SC + 1, vMC + 1))
    s.append("v_xor_b32 v%d, v%d, v%d" % (SP, SC, SP + 2))
    s.append("v_xor_b32 v%d, v%d, v%d" % (SP + 1, SC + 1, SP + 3))
    s.append("v_mfma_f32_16x16x32_bf16 %s, %s, %s, 0" % (vr(SM, 4), vr(ONESB, 4), vr(SP, 4)))
    s.append("v_mfma_f32_16x16x32_bf16 %s, %s, %s, 0" % (vr(SC, 4), vr(VP(p, u - 1), 4), vr(SP, 4)))
    s.append("v_rcp_f32 v%d, v%d" % (m0, SM))
    for r in (0, 2): s.append("v_pk_mul_f32 v[%d:%d], v[%d:%d], v[%d:%d] op_sel_hi:[1,0]" % (SC + r, SC + r + 1, SC + r, SC + r + 1, m0, m0 + 1))
    s.append("v_cvt_pk_bf16_f32 v%d, v%d, v%d" % (QP(t), SC, SC + 1))
    s.append("v_cvt_pk_bf16_f32 v%d, v%d, v%d" % (QP(t) + 1, SC + 2, SC + 3))
    return s
for grp in range(2):
    ss = [unit(4 * grp + i, 8 + 16 * i) for i in range(4)]
    for x in sched.interleave(ss): a(x)
    for u in (2 * grp, 2 * grp + 1):
        b = QP(2 * u)
        a("v_permlane16_swap_b32 v%d, v%d\nv_permlane16_swap_b32 v%d, v%d" % (b, b + 2, b + 1, b + 3))
        a("s_mov_b32 s%d, %d" % (sT0, 2 * u * 16384))
        a("buffer_store_dwordx4 %s, v%d, s[%d:%d], s%d offen sc1" % (vr(b, 4), vOPA, sWS, sWS + 3, sT0))
stamp(5)
a("s_waitcnt vmcnt(0)")
a("s_barrier")
a("s_branch L_p2wait")

a("L_loader:")
a("v_lshrrev_b32 v1, 3, v0\nv_and_b32 v2, 7, v0")
vXS, vHS, vWS_, vWOS = 8, 10, 12, 14
a("v_lshrrev_b32 v3, 1, v1")
for mh in range(2):
    a("v_or_b32 v4, %d, v3\nv_xor_b32 v4, v4, v2\nv_lshlrev_b32 v4, 4, v4" % (4 * mh))
    a("v_lshl_add_u32 v4, v1, 11, v4\nv_add_u32 v%d, %d, v4" % (vXS + mh, mh * 16 * 1024))
a("s_lshl_b32 s%d, s%d, 2\nv_add_u32 v4, s%d, v1" % (sT0, sLW, sT0))
a("v_and_b32 v5, 7, v4\nv_lshlrev_b32 v5, 1, v5\nv_lshrrev_b32 v6, 3, v4\nv_add_u32 v5, v5, v6")
a("s_lshl_b32 s%d, s%d, 7\ns_sub_u32 s%d, s%d, 16\nv_add_u32 v5, s%d, v5\nv_max_i32 v5, 0, v5" % (sT0, sRT, sT0, sT0, sT0))
a("v_lshrrev_b32 v6, 1, v4\nv_and_b32 v6, 7, v6\nv_xor_b32 v6, v6, v2\nv_lshlrev_b32 v6, 4, v6\nv_lshl_add_u32 v%d, v5, 10, v6" % vHS)
a("v_and_b32 v4, 1, v3\nv_lshrrev_b32 v5, 1, v2\nv_and_b32 v6, 1, v2")
a("v_mul_u32_u24 v7, 3072, v1")
for kp in range(2):
    a("v_or_b32 v16, %d, v4\nv_xor_b32 v16, v16, v5\nv_lshlrev_b32 v16, 5, v16\nv_lshl_add_u32 v16, v6, 4, v16" % (2 * kp))
    a("v_add_u32 v16, v16, v7\nv_add_u32 v%d, %d, v16" % (vWS_ + kp, kp * 8 * 3072))
a("v_lshrrev_b32 v3, 4, v0\nv_bfe_u32 v4, v0, 1, 3\nv_and_b32 v5, 1, v0")
a("s_lshl_b32 s%d, s%d, 8" % (sT0, sCT))
for b in range(2):
    a("v_or_b32 v6, %d, v3\nv_xor_b32 v6, v6, v4\nv_lshlrev_b32 v6, 5, v6\nv_lshl_add_u32 v6, v5, 4, v6" % (4 * b))
    a("v_lshl_add_u32 v6, v3, 10, v6\nv_add_u32 v%d, s%d, v6" % (vWOS + b, sT0))

a("v_and_b32 v25, 7, v0\nv_lshlrev_b32 v25, 2, v25\nv_add_u32 v25, 128, v25\nv_mov_b32 v24, 0")
def dma(vaddr, srd_, soff, ldsreg_or_imm):
    a("s_mov_b32 m0, %s" % ldsreg_or_imm)
    a("buffer_load_dwordx4 v%d, s[%d:%d], s%d offen lds" % (vaddr, srd_, srd_ + 3, soff))

def loader(br):
    n = 11 if br else 10
    sLX, sLH, sLWb = 74, 75, 67
    a("s_lshl_b32 s%d, s%d, 12" % (sLX, sLW))
    a("s_lshl_b32 s%d, s%d, 9\ns_add_u32 s%d, s%d, 16384" % (sLH, sLW, sLH, sLH))
    a("s_lshl_b32 s%d, s%d, 11\ns_add_u32 s%d, s%d, %d" % (sLWb, sLW, sLWb, sLWb, WOFF))
    a("s_lshl_b32 s%d, s%d, 17\ns_lshl_b32 s%d, s%d, 15\ns_add_u32 s18, s%d, s%d" % (sT0, sRT, sT1, sLW, sT0, sT1))
    a("s_mul_i32 s%d, s%d, %d\ns_lshl_b32 s%d, s%d, 7\ns_add_u32 s19, s%d, s%d" % (sT0, sLW, 16 * 3072, sT1, sHG, sT0, sT1))
    def chunk(c):
        sl = (c % 3) * SLOT
        a("s_add_u32 s%d, s%d, %d\ns_and_b32 s%d, s%d, 7" % (sKC, sROT, c, sKC, sKC))
        a("s_lshl_b32 s%d, s%d, 7" % (sH, sKC))
        a("s_add_u32 s%d, s18, s%d\ns_add_u32 s%d, s%d, 1024" % (sX0, sH, sX1, sX0))
        a("s_mul_i32 s%d, s%d, %d\ns_add_u32 s%d, s19, s%d" % (sW0, sKC, 64 * 3072, sW0, sW0))
        a("s_add_u32 s%d, s%d, 1024\ns_add_u32 s%d, s%d, 2048" % (sW1, sW0, sW2, sW0))
        def wpart():
          for part, sw in enumerate((sW0, sW1, sW2)):
            for kp in range(2):
                a("s_add_u32 m0, s%d, %d" % (sLWb, sl + part * 8192 + kp * 1024))
                a("buffer_load_dwordx4 v%d, s[%d:%d], s%d offen%s lds" % (vWS_ + kp, sW, sW + 3, sw, NTW))
        xfirst = OPT.get("xfirst", 0) and c >= 1
        if not xfirst: wpart()
        for pp, sx in enumerate((sX0, sX1)):
            for mh in range(2):
                a("s_add_u32 m0, s%d, %d" % (sLX, sl + pp * 2048 + mh * 1024))
                a("buffer_load_dwordx4 v%d, s[%d:%d], s%d offen%s lds" % (vXS + mh, sX, sX + 3, sx, NTX))
        if br:
            a("s_add_u32 m0, s%d, %d" % (sLH, sl))
            a("s_mov_b32 exec_hi, 0")
            a("buffer_load_dwordx4 v%d, s[%d:%d], s%d offen lds" % (vHS, sX, sX + 3, sH))
            a("s_mov_b32 exec_hi, -1")
        if xfirst: wpart()
    def wo(n0, n1):
        for nn in range(n0, n1):
            a("s_lshl_b32 s%d, s%d, 12\ns_add_u32 s%d, s%d, %d" % (sT0, sLW, sT0, sT0, nn * 16384))
            a("s_lshl_b32 s%d, s%d, 10\ns_add_u32 m0, s%d, %d" % (sT1, sLW, sT1, WO_BASE + nn * 4096))
            a("buffer_load_dwordx4 v%d, s[%d:%d], s%d offen lds" % (vWOS + (nn & 1), sWO, sWO + 3, sT0))
    if br == 0:
        a("s_cmp_eq_u32 s%d, 0\ns_cbranch_scc0 L_noinit" % sRT)
        a("s_lshl_b32 s%d, s%d, 2\ns_add_u32 s%d, s%d, s%d" % (sT0, sHG, sT0, sT0, sLW))
        a("s_lshl_b32 s%d, s%d, 10\ns_add_u32 s%d, s%d, 0x%x" % (sT1, sT0, sT1, sT1, WS_KV))
        a("v_lshl_add_u32 v16, v0, 4, s%d" % sT1)
        a("v_mov_b32 v20, 0\nv_mov_b32 v21, 0\nv_mov_b32 v22, 0\nv_mov_b32 v23, 0")
        a("buffer_store_dwordx4 v[20:23], v16, s[%d:%d], 0 offen sc1" % (sWS, sWS + 3))
        a("s_lshl_b32 s%d, s%d, 6\ns_add_u32 s%d, s%d, 0x%x" % (sT1, sT0, sT1, sT1, WS_Z))
        a("s_lshl_b32 s%d, s%d, 8\ns_add_u32 s%d, s%d, %d\ns_sub_u32 s%d, s%d, 64" % (sT2, sT0, sT2, sT2, WS_FLAG, sT2, sT2))
        a("v_lshl_add_u32 v17, v0, 4, s%d\nv_lshl_add_u32 v18, v0, 4, s%d" % (sT1, sT2))
        a("s_lshl_b32 s%d, s%d, 8\ns_add_u32 s%d, s%d, %d\nv_lshl_add_u32 v19, v0, 4, s%d" % (sT2, sHG, sT2, sT2, WS_FLAG + 32 * 256 - 20 * 16, sT2))
        a("v_cmp_gt_u32 vcc, 4, v0\nv_cndmask_b32 v17, v18, v17, vcc")
        a("v_cmp_gt_u32 vcc, 20, v0\nv_cndmask_b32 v17, v19, v17, vcc")
        a("s_mov_b64 s[%d:%d], exec\ns_mov_b64 exec, 0xffffff" % (sSAVE, sSAVE + 1))
        a("buffer_store_dwordx4 v[20:23], v17, s[%d:%d], 0 offen sc1" % (sWS, sWS + 3))
        a("s_mov_b64 exec, s[%d:%d]" % (sSAVE, sSAVE + 1))
        a("L_noinit:")
    PRE = OPT.get("pre", 3)
    chunk(0)
    if OPT.get("pace", 1): a("s_barrier")
    if PRE >= 2: chunk(1)
    if OPT.get("pace", 1) >= 2: a("s_barrier")
    if PRE >= 3: chunk(2)
    for c in range(8):
        if c == 0: w = (PRE - 1) * n
        elif c <= 5: w = n
        elif c == 6: w = n + 8
        else: w = 19
        a("s_waitcnt vmcnt(%d)" % w)
        if c == 7:
            lab = a.lab("L_ini")
            a("s_cmp_eq_u32 s%d, 0\ns_cbranch_scc0 %s_x" % (sLW, lab))
            a("s_mov_b32 s%d, 0" % sCNT)
            a("%s:" % lab)
            a("v_cmp_eq_u32 vcc, 1, v24\ns_cmp_eq_u64 vcc, -1\ns_cbranch_scc1 %s_x" % lab)
            a("s_add_u32 s%d, s%d, 1\ns_cmp_gt_u32 s%d, 100000\ns_cbranch_scc1 %s_x" % (sCNT, sCNT, sCNT, lab))
            a("buffer_load_dword v24, v25, s[%d:%d], 0 offen sc1\ns_waitcnt vmcnt(0)\ns_branch %s" % (sDBG, sDBG + 3, lab))
            a("%s_x:" % lab)
        a("s_barrier")
        if c == 0 and br == 0:
            lab = a.lab("L_ifl")
            a("s_cmp_eq_u32 s%d, 0\ns_cbranch_scc0 %s\ns_cmp_eq_u32 s%d, 0\ns_cbranch_scc0 %s" % (sRT, lab, sLW, lab))
            a("s_lshl_b32 s%d, s%d, 2\ns_add_u32 s%d, s%d, 128\nv_mov_b32 v16, s%d\nv_mov_b32 v17, 1" % (sT0, sHG, sT0, sT0, sT0))
            a("s_mov_b64 s[%d:%d], exec\ns_mov_b64 exec, 1" % (sSAVE, sSAVE + 1))
            a("buffer_store_dword v17, v16, s[%d:%d], 0 offen sc1" % (sDBG, sDBG + 3))
            a("s_mov_b64 exec, s[%d:%d]" % (sSAVE, sSAVE + 1))
            a("%s:" % lab)
        if c == 0:
            for cc in range(PRE, 3): chunk(cc)
        if 1 <= c <= 5: chunk(c + 2)
        if c == 5:
            lab = a.lab("L_dbg")
            a("s_cmp_eq_u32 s%d, 0\ns_cbranch_scc0 %s" % (sLW, lab))
            a("buffer_load_dword v24, v25, s[%d:%d], 0 offen sc1" % (sDBG, sDBG + 3))
            a("%s:" % lab)
            wo(24, 32)
        if c == 6: wo(13, 24)
        if c == 7: wo(0, 2)
    a("s_barrier")
    def flag_store(vaddr):
        lab = a.lab("L_nf")
        a("s_cmp_eq_u32 s%d, 0\ns_cbranch_scc0 %s" % (sLW, lab))
        a("s_mov_b64 s[%d:%d], exec\ns_mov_b64 exec, 1" % (sSAVE, sSAVE + 1))
        a("buffer_store_dword v17, v%d, s[%d:%d], 0 offen sc1" % (vaddr, sWS, sWS + 3))
        a("s_mov_b64 exec, s[%d:%d]" % (sSAVE, sSAVE + 1))
        a("%s:" % lab)
    a("s_lshl_b32 s%d, s%d, 8\ns_lshl_b32 s%d, s%d, 2\ns_add_u32 s%d, s%d, s%d\ns_add_u32 s%d, s%d, %d" % (sT0, sRT, sT1, sHG, sT0, sT0, sT1, sT0, sT0, WS_FLAG + br * 4096))
    a("v_mov_b32 v16, s%d\nv_mov_b32 v17, 1" % sT0)
    if br == 0:
        a("s_lshl_b32 s%d, s%d, 8\ns_add_u32 s%d, s%d, %d\ns_lshl_b32 s%d, s%d, 2\ns_add_u32 s%d, s%d, s%d" % (sT0, sHG, sT0, sT0, WS_FLAG + 32 * 256, sT1, sRT, sT1, sT0, sT1))
        a("v_mov_b32 v18, s%d\nv_and_b32 v19, 15, v0\nv_lshl_add_u32 v19, v19, 2, s%d" % (sT1, sT0))
        a("s_barrier")
        flag_store(18)
        lab = a.lab("L_kp")
        a("s_cmp_eq_u32 s%d, 0\ns_cbranch_scc1 %s_p" % (sLW, lab))
        wo(2, 13)
        a("s_branch %s_x" % lab)
        a("%s_p:\ns_mov_b32 s%d, 0" % (lab, sCNT))
        stamp(3)
        a("%s:" % lab)
        a("buffer_load_dword v20, v19, s[%d:%d], 0 offen sc1\ns_waitcnt vmcnt(0)" % (sWS, sWS + 3))
        a("v_cmp_eq_u32 vcc, 1, v20\ns_cmp_eq_u64 vcc, -1\ns_cbranch_scc1 %s_x" % lab)
        a("s_add_u32 s%d, s%d, 1\ns_cmp_gt_u32 s%d, 100000\ns_cbranch_scc1 %s_x" % (sCNT, sCNT, sCNT, lab))
        if OPT["sleep"]: a("s_sleep %d" % OPT["sleep"])
        a("s_branch %s" % lab)
        a("%s_x:" % lab)
        a("s_barrier")
        a("s_cmp_eq_u32 s%d, 0\ns_cbranch_scc0 %s_y" % (sLW, lab))
        wo(2, 13)
        a("%s_y:" % lab)
    elif not OPT.get("wolate", 0):
        wo(2, 13)
    a("s_barrier")
    stamp(5)
    flag_store(16)
    if br and OPT.get("wolate", 0): wo(2, 13)
    a("s_branch L_p2wait")

def poll(br):
    lab = a.lab("L_fl")
    a("s_cmp_eq_u32 s%d, 4\ns_cbranch_scc0 %s_x" % (sWAVE, lab))
    a("s_mov_b32 s%d, 0" % sCNT)
    a("s_lshr_b32 s%d, s%d, 1\ns_lshl_b32 s%d, s%d, 8\ns_lshl_b32 s%d, s%d, 12\ns_add_u32 s%d, s%d, s%d" % (sT0, sRB, sT0, sT0, sT1, sBR, sT0, sT0, sT1))
    if WS_FLAG: a("s_add_u32 s%d, s%d, %d" % (sT0, sT0, WS_FLAG))
    a("v_and_b32 v60, 7, v0\nv_lshl_add_u32 v60, v60, 2, s%d" % sT0)
    a("%s:" % lab)
    a("buffer_load_dword v61, v60, s[%d:%d], 0 offen sc1\ns_waitcnt vmcnt(0)" % (sWS, sWS + 3))
    a("v_cmp_eq_u32 vcc, 1, v61")
    a("s_cmp_eq_u64 vcc, -1\ns_cbranch_scc1 %s_x" % lab)
    a("s_add_u32 s%d, s%d, 1\ns_cmp_gt_u32 s%d, 100000\ns_cbranch_scc1 %s_x" % (sCNT, sCNT, sCNT, lab))
    if OPT["sleep"]: a("s_sleep %d" % OPT["sleep"])
    a("s_branch %s" % lab)
    a("%s_x:" % lab)

a("s_cmp_eq_u32 s%d, 0\ns_cbranch_scc0 L_loaderB" % sBR)
loader(0)
a("L_loaderB:")
loader(1)

a("L_p2wait:")
a("s_cmp_ge_u32 s%d, 4\ns_cbranch_scc1 L_p2load" % sWAVE)
vACC, vOPF, vWA, vOUT, vOPR = 8, 40, 72, 76, 77
a("v_and_b32 v1, 15, v0\nv_lshrrev_b32 v2, 4, v0")
a("v_bfe_u32 v3, v0, 2, 2\nv_and_b32 v4, 3, v0\nv_and_b32 v5, 1, v2")
a("v_lshl_or_b32 v6, v5, 2, v3\nv_lshlrev_b32 v6, 5, v6\nv_lshl_add_u32 v6, v4, 3, v6")
a("v_lshrrev_b32 v7, 1, v2\nv_lshlrev_b32 v7, 3, v7\nv_lshl_add_u32 v7, v5, 4, v7\nv_add_u32 v7, v7, v3")
a("v_lshl_add_u32 v6, v7, 8, v6\nv_add_u32 v6, %d, v6" % WO_BASE)
a("s_lshl_b32 s%d, s%d, 6\nv_xor_b32 v%d, s%d, v6\nv_xor_b32 v%d, 32, v%d" % (sT0, sWAVE, vWA, sT0, vWA + 1, vWA))
a("v_add_u32 v%d, 0x10000, v%d\nv_add_u32 v%d, 0x10000, v%d" % (vWA + 2, vWA, vWA + 3, vWA + 1))
def WF(c, j):
    i = c * 16 + j
    return ("a", 4 * i) if i < 24 else ("v", 112 + 4 * (i - 24))
def wfr(c, j, o, n):
    k, b = WF(c, j)
    return (ar if k == "a" else vr)(b + o, n)
a("s_barrier")
for j in range(16):
    for c in range(2):
        for rd in range(2):
            a("ds_read_b64_tr_b16 %s, v%d offset:%d" % (wfr(c, j, 2 * rd, 2), vWA + c + 2 * (j >> 3), (j & 7) * 8192 + rd * 1024))
a("s_lshl_b32 s%d, s%d, 17\ns_lshl_b32 s%d, s%d, 10\ns_add_u32 s%d, s%d, s%d\ns_lshl_b32 s%d, s%d, 8\ns_add_u32 s%d, s%d, s%d\ns_lshl_b32 s%d, s%d, 6\ns_add_u32 s%d, s%d, s%d" % (sT2, sRB, sT3, sBR, sT2, sT2, sT3, sT3, sCT, sT2, sT2, sT3, sT3, sWAVE, sT2, sT2, sT3))
a("v_lshlrev_b32 v3, 12, v1\nv_and_b32 v4, 1, v2\nv_lshl_add_u32 v3, v4, 5, v3\nv_lshrrev_b32 v4, 1, v2\nv_lshl_add_u32 v3, v4, 4, v3\nv_add_u32 v%d, s%d, v3" % (vOUT, sT2))
a("v_lshlrev_b32 v%d, 4, v0" % vOPR)
a("s_mov_b32 s%d, 2048\ns_mov_b32 s%d, 0x10000\ns_mov_b32 s%d, 0x10800" % (sT3, sT4, sT5))
ALL8 = OPT.get("all8", 0)
def op_src_setup(vd, srg):
    a("s_lshl_b32 s%d, s%d, 2\ns_add_u32 s%d, s%d, s%d\ns_lshl_b32 s%d, s%d, 14\ns_lshl_b32 s%d, s%d, 21\ns_add_u32 s%d, s%d, s%d\ns_add_u32 s%d, s%d, 0x%x" % (sT2, sRB, sT2, sT2, srg, sT2, sT2, sT0, sBR, sT2, sT2, sT0, sT2, sT2, WS_OP))
    a("v_lshl_add_u32 v%d, v0, 4, s%d" % (vd, sT2))
    a("s_lshl_b32 s%d, s%d, 14" % (sM, srg))
def op_dma(vd, js):
    for j in js:
        a("s_add_u32 m0, s%d, %d\ns_mov_b32 s%d, %d" % (sM, j * 1024, sT2, j * 1024))
        a("buffer_load_dwordx4 v%d, s[%d:%d], s%d offen sc1 lds" % (vd, sWS, sWS + 3, sT2))
if ALL8: op_src_setup(78, sWAVE)
a("s_waitcnt lgkmcnt(0)")
a("s_barrier")
stamp(7)
if ALL8: op_dma(78, range(0, 16, 2))
dq = sched.DsQueue(a)
def op_read(j):
    return ["ds_read_b128 %s, v%d offset:%d" % (vr(vOPF + 16 * (j & 1) + 4 * rg, 4), vOPR, rg * 16384 + j * 1024) for rg in range(4)]
GRP = [0, 4, 8, 12]
if ALL8: a("s_waitcnt vmcnt(6)")
a("s_barrier")
for x in op_read(0): dq(x)
for j in range(16):
    nxt = []
    if j < 15:
        if (j + 1) in GRP:
            if ALL8: a("s_waitcnt vmcnt(%d)" % (6 - 2 * GRP.index(j + 1)))
            a("s_barrier")
        nxt = op_read(j + 1)
    for rg in range(4):
        for c in range(2):
            dq("v_mfma_f32_16x16x32_bf16 %s, %s, %s, %s" % (vr(vACC + 8 * rg + 4 * c, 4), wfr(c, j, 0, 4), vr(vOPF + 16 * (j & 1) + 4 * rg, 4), "0" if j == 0 else vr(vACC + 8 * rg + 4 * c, 4)))
        if nxt: dq(nxt[rg])
stamp(9)
for rg in range(4):
    b = 40 + 4 * rg
    for c in range(2):
        r0 = vACC + 8 * rg + 4 * c
        a("v_cvt_pk_bf16_f32 v%d, v%d, v%d\nv_cvt_pk_bf16_f32 v%d, v%d, v%d" % (b + 2 * c, r0, r0 + 1, b + 2 * c + 1, r0 + 2, r0 + 3))
    a("v_permlane16_swap_b32 v%d, v%d\nv_permlane16_swap_b32 v%d, v%d" % (b, b + 2, b + 1, b + 3))
    a("buffer_store_dwordx4 %s, v%d, s[%d:%d], %s offen%s" % (vr(b, 4), vOUT, sOUT, sOUT + 3, ["0", "s%d" % sT3, "s%d" % sT4, "s%d" % sT5][rg], ["", " sc1", " nt", " sc0 sc1", " sc1 nt"][OPT.get("outst", 1)]))
a("s_branch L_fin")

a("L_p2load:")
op_src_setup(8, sLW)
a("s_waitcnt vmcnt(0)")
a("s_barrier")
stamp(4)
poll(0)
a("s_barrier")
stamp(7)
if OPT.get("regst", 0):
    a("v_lshlrev_b32 v9, 4, v0\nv_add_u32 v9, s%d, v9" % sM)
    a("s_movk_i32 s%d, 0x1000\ns_movk_i32 s%d, 0x2000\ns_movk_i32 s%d, 0x3000" % (sT3, sT4, sT5))
    for j in range(16):
        a("buffer_load_dwordx4 %s, v8, s[%d:%d], %s offen offset:%d sc1" % (vr(12 + 4 * j, 4), sWS, sWS + 3, ["0", "s%d" % sT3, "s%d" % sT4, "s%d" % sT5][j >> 2], (j & 3) * 1024))
else:
    op_dma(8, range(1, 16, 2) if ALL8 else range(16))
for g in range(4):
    if OPT.get("regst", 0):
        for j in range(4 * g, 4 * g + 4):
            a("s_waitcnt vmcnt(%d)" % (15 - j))
            a("ds_write_b128 v9, %s offset:%d" % (vr(12 + 4 * j, 4), j * 1024))
        a("s_waitcnt lgkmcnt(0)")
    else:
        a("s_waitcnt vmcnt(%d)" % ((6 - 2 * g) if ALL8 else (12 - 4 * g)))
    a("s_barrier")
    if g == 0: stamp(8)
    if g == 3: stamp(9)
a("L_fin:")
if STAMPS:
    stamp(10)
    a("s_waitcnt vmcnt(0)")
    stamp(11)
    a("s_waitcnt lgkmcnt(0)")
    if STAMPS == 3:
        a("s_cmp_eq_u32 s2, %d\ns_cbranch_scc0 L_end\ns_cmp_eq_u32 s%d, 0\ns_cbranch_scc0 L_end" % (OPT.get("ampwg", 0), sWAVE))
        a("s_sub_u32 s%d, s%d, s%d\ns_mul_i32 s%d, s%d, %d" % (sT0, sSTB + 2 * OPT["ampb"], sSTB + 2 * OPT["ampa"], sT0, sT0, OPT["amp"]))
        a("s_add_u32 s%d, s%d, s%d" % (sT0, sT0, sSTB + 22))
        a("s_mov_b32 s%d, 0" % sCNT)
        a("L_amp:\ns_memrealtime s[%d:%d]\ns_waitcnt lgkmcnt(0)\ns_add_u32 s%d, s%d, 1\ns_cmp_gt_u32 s%d, 200000\ns_cbranch_scc1 L_end" % (sT2, sT3, sCNT, sCNT, sCNT))
        a("s_sub_u32 s%d, s%d, s%d\ns_cmp_lt_i32 s%d, 0\ns_cbranch_scc1 L_amp\ns_branch L_end" % (sT1, sT2, sT0, sT1))
    if STAMPS == 2:
        a("s_and_b32 s%d, s%d, 3\ns_cmp_eq_u32 s%d, 0\ns_cbranch_scc0 L_end" % (sT0, sWAVE, sT0))
        a("s_mov_b64 exec, 1")
        a("s_not_b32 s%d, s%d" % (sSTB, sSTB))
        for j in range(NSTAMP):
            a("v_mov_b32 v6, s%d\nv_mov_b32 v5, %d" % (sSTB + 2 * j, 4 * j))
            a("buffer_atomic_umax v6, v5, s[%d:%d], 0 offen sc1" % (sDBG, sDBG + 3))
        a("s_lshl_b32 s%d, s%d, 2\ns_add_u32 s%d, s%d, 48\nv_mov_b32 v5, s%d\nv_mov_b32 v6, s%d" % (sT0, sBR, sT0, sT0, sT0, sSTB + 22))
        a("buffer_atomic_umax v6, v5, s[%d:%d], 0 offen sc1" % (sDBG, sDBG + 3))
        a("s_branch L_end")
    a("s_and_b32 s%d, s%d, 3\ns_cmp_eq_u32 s%d, 0\ns_cbranch_scc0 L_end" % (sT0, sWAVE, sT0))
    a("s_lshr_b32 s%d, s%d, 2\ns_lshl_b32 s%d, s2, 1\ns_add_u32 s%d, s%d, s%d\ns_mul_i32 s%d, s%d, %d\ns_add_u32 s%d, s%d, 0x%x" % (sT0, sWAVE, sT1, sT0, sT0, sT1, sT0, sT0, NSTAMP * 8, sT0, sT0, WS_STAMP))
    a("v_mov_b32 v5, s%d" % sT0)
    for j in range(NSTAMP):
        a("v_mov_b32 v6, s%d\nv_mov_b32 v7, s%d" % (sSTB + 2 * j, sSTB + 2 * j + 1))
        a("buffer_store_dwordx2 v[6:7], v5, s[%d:%d], 0 offen offset:%d" % (sWS, sWS + 3, 8 * j))
a("L_end:\ns_endpgm")

body = a.finalize()
hdr = open("concat_heads__linear_attn_block__sliding_local_dilated__prompt.s.ref").read().split("; Override launch")[0]
txt = hdr + "; @launch grid=(256,1,1) block=(512,1,1) lds=%d\n" % LDS_BYTES
txt += '.amdgcn_target "amdgcn-amd-amdhsa--gfx950"\n.text\n.globl %s\n.p2align 8\n.type %s,@function\n%s:\n' % (KN, KN, KN)
txt += body
txt += ('.section .rodata,"a"\n.p2align 6\n.amdhsa_kernel %s\n  .amdhsa_next_free_vgpr 256\n  .amdhsa_next_free_sgpr 102\n'
        '  .amdhsa_accum_offset 160\n  .amdhsa_group_segment_fixed_size 0\n  .amdhsa_kernarg_size 72\n  .amdhsa_user_sgpr_count 2\n'
        '  .amdhsa_user_sgpr_kernarg_segment_ptr 1\n  .amdhsa_system_sgpr_workgroup_id_x 1\n  .amdhsa_float_denorm_mode_32 3\n.end_amdhsa_kernel\n') % KN
open(sys.argv[1], "w").write(txt)
print("instructions:", a.count)
```

```python
import sys
from isa import Asm, Ins
import sched

KN = "concat_heads__linear_attn_block__sliding_local_dilated__prompt_kernel"
OPT = dict(stamps=0, rot=1, stop=99, prio=0, sleep=4, touch=0, pre=2, pace=1)
for x in sys.argv[2:]:
    k, v = x.split("="); OPT[k] = int(v)
STAMPS = OPT["stamps"]
NTW = " nt" if OPT.get("ntw", 0) else ""
NTX = " nt" if OPT.get("ntx", 0) else ""
ATOM = " sc1" if OPT.get("atomsc1", 1) else ""

WS_FLAG = 0x0
WS_KV = 0x4000
WS_Z = 0xC000
WS_OP = 0x100000
WS_STAMP = 128 << 20
WS_BYTES = 268435456
SLOT = 43008
WOFF = 18432
WO_BASE = 32768
LDS_K = 0
LDS_Z = 16384
LDS_BYTES = 163840
BIG = 0xf149f2ca
EPS = 0x358637bd
LOG2E = 0x3fb8aa3b
NEG_EPS_LOG2E = 0xb5c1a4b9
import struct
def f2u(f): return struct.unpack("<I", struct.pack("<f", f))[0]
import math
LOG2E = f2u(math.log2(math.e)); EPS = f2u(1e-6); BIG = f2u(-1e30)
NEG_EPS_LOG2E = f2u(-1e-6 * math.log2(math.e))
SCALE_C = f2u(0.25 * math.log2(math.e))

sX, sW, sWO, sOUT, sWS, sDBG = 20, 24, 28, 32, 36, 40
sBR, sRT, sHG, sWAVE, sRB, sCT, sLW, sROT = 44, 45, 46, 47, 48, 49, 50, 51
sT0, sT1, sT2, sT3, sT4, sT5 = 52, 53, 54, 55, 56, 57
sX0, sX1, sH, sW0, sW1, sW2, sKC = 58, 59, 60, 61, 62, 63, 64
sM, sCNT, sSAVE = 65, 66, 68
sC0, sC1, sC2, sC3 = 70, 71, 72, 73
sSTB = 76
NSTAMP = 12

a = Asm()

def stamp(i, force=False):
    if OPT.get("bst", 0) and i >= 3 and not force: return
    if STAMPS:
        if OPT.get("clk", 0):
            a("s_memtime s[%d:%d]" % (sSTB + 2 * i, sSTB + 2 * i + 1))
        else:
            a("s_memrealtime s[%d:%d]" % (sSTB + 2 * i, sSTB + 2 * i + 1))

def stamp_wait():
    if STAMPS:
        a("s_waitcnt lgkmcnt(0)")

def srd(d, base, nbytes):
    a("s_mov_b32 s%d, s%d\ns_and_b32 s%d, s%d, 0xffff\ns_mov_b32 s%d, 0x%x\ns_mov_b32 s%d, 0x00020000" % (d, base, d + 1, base + 1, d + 2, nbytes, d + 3))

def vr(b, n=1):
    return "v%d" % b if n == 1 else "v[%d:%d]" % (b, b + n - 1)
def ar(b, n=1):
    return "a%d" % b if n == 1 else "a[%d:%d]" % (b, b + n - 1)

a("s_cmp_ge_u32 s2, 256\ns_cbranch_scc1 L_end")
if STAMPS:
    for i in range(2 * NSTAMP): a("s_mov_b32 s%d, 0" % (sSTB + i))
stamp(0)
a("s_and_b32 s%d, s2, 7" % sT0)
a("s_lshr_b32 s%d, s2, 3" % sT1)
a("s_lshr_b32 s%d, s%d, 2" % (sBR, sT0))
a("s_mul_i32 s%d, s%d, 24" % (sT2, sBR))
a("s_add_u32 s18, s0, s%d\ns_addc_u32 s19, s1, 0" % sT2)
a("s_load_dwordx4 s[4:7], s[18:19], 0")
a("s_load_dwordx2 s[8:9], s[18:19], 16")
a("s_load_dwordx4 s[12:15], s[0:1], 48")
a("s_load_dwordx2 s[16:17], s[0:1], 64")
a("v_lshrrev_b32 v1, 6, v0\nv_and_b32 v0, 63, v0")
a("s_and_b32 s%d, s%d, 1\ns_lshl_b32 s%d, s%d, 3\ns_and_b32 s%d, s%d, 7\ns_add_u32 s%d, s%d, s%d" % (sT2, sT0, sT2, sT2, sT3, sT1, sRT, sT2, sT3))
a("v_readfirstlane_b32 s%d, v1" % sWAVE)
a("s_lshr_b32 s%d, s%d, 1\ns_and_b32 s%d, s%d, 1\ns_lshl_b32 s%d, s%d, 2\ns_lshr_b32 s%d, s%d, 3\ns_add_u32 s%d, s%d, s%d" % (sT2, sT0, sT2, sT2, sT2, sT2, sT4, sT1, sHG, sT2, sT4))
a("s_and_b32 s%d, s%d, 3\ns_lshl_b32 s%d, s%d, 3\ns_lshr_b32 s%d, s%d, 2\ns_add_u32 s%d, s%d, s%d" % (sT2, sT0, sT2, sT2, sT5, sT1, sRB, sT2, sT5))
a("s_and_b32 s%d, s%d, 3" % (sCT, sT1))
if OPT["rot"] == 1:
    a("s_lshl_b32 s%d, s%d, 1\ns_add_u32 s%d, s%d, s%d\ns_and_b32 s%d, s%d, 7" % (sROT, sT4, sROT, sROT, sT3, sROT, sROT))
elif OPT["rot"] == 2:
    a("s_and_b32 s%d, s%d, 1\ns_lshl_b32 s%d, s%d, 2" % (sROT, sT3, sROT, sROT))
else:
    a("s_mov_b32 s%d, 0" % sROT)
a("s_and_b32 s%d, s%d, 3" % (sLW, sWAVE))
a("s_waitcnt lgkmcnt(0)")
stamp(1)
srd(sX, 4, 2048 * 1024)
srd(sW, 6, 512 * 3072)
srd(sWO, 8, 512 * 1024)
srd(sOUT, 12, 2048 * 2048)
srd(sDBG, 14, 256)
srd(sWS, 16, WS_BYTES)
a("s_cmp_ge_u32 s%d, 4\ns_cbranch_scc1 L_loader" % sWAVE)

vQ, vK, vKH, vV, vVH = 8, 40, 72, 76, 108
vXR = 112
vWR = 118
vB = 121
vBC, vBP, vBH0, vBH1, vMC = 122, 126, 130, 134, 138
vTMP = 140
aXF, aWF = 0, 36

if OPT.get("touch", 1):
    a("s_lshr_b32 s%d, s2, 3\ns_and_b32 s%d, s%d, 7\ns_lshr_b32 s%d, s%d, 3" % (sT0, sT1, sT0, sT2, sT0))
    a("v_lshrrev_b32 v1, 5, v0\nv_and_b32 v2, 31, v0")
    a("s_lshl_b32 s%d, s%d, 1\ns_add_u32 s%d, s%d, %d\ns_add_u32 s%d, s%d, s%d" % (sT3, sWAVE, sT3, sT3, OPT.get("t0", 1), sT3, sT3, sROT))
    a("v_add_u32 v3, s%d, v1\nv_and_b32 v3, 7, v3" % sT3)
    a("s_lshl_b32 s%d, s%d, 7\ns_lshl_b32 s%d, s%d, 5\ns_add_u32 s%d, s%d, s%d" % (sT4, sRT, sT5, sT2, sT4, sT4, sT5))
    a("v_add_u32 v4, s%d, v2\nv_lshlrev_b32 v4, 10, v4\nv_lshl_add_u32 v4, v3, 7, v4" % sT4)
    a("s_mul_i32 s%d, s%d, 24\nv_min_u32 v5, 23, v2\nv_add_u32 v5, s%d, v5" % (sT4, sT1, sT4))
    a("v_and_b32 v6, 63, v5\nv_lshl_add_u32 v6, v3, 6, v6\nv_mul_u32_u24 v6, 3072, v6\nv_lshrrev_b32 v5, 6, v5\nv_lshl_add_u32 v6, v5, 10, v6")
    a("s_lshl_b32 s%d, s%d, 7\nv_add_u32 v159, s%d, v6\nv_mov_b32 v158, v4" % (sT4, sHG, sT4))
TP = [OPT.get("tp0", 0), OPT.get("tp1", 0), OPT.get("tp2", 0), OPT.get("tp3", 0)]
def touch_at(point):
    if not OPT.get("touch", 1): return
    ws_ = [w for w in range(4) if TP[w] == point]
    if not ws_: return
    lab = a.lab("L_tch")
    if len(ws_) < 4:
        mask = sum(1 << w for w in ws_)
        a("s_lshl_b32 s%d, 1, s%d\ns_and_b32 s%d, s%d, %d\ns_cbranch_scc0 %s" % (sT0, sWAVE, sT0, sT0, mask, lab))
    a("buffer_load_dword v156, v158, s[%d:%d], 0 offen" % (sX, sX + 3))
    a("buffer_load_dword v157, v159, s[%d:%d], 0 offen" % (sW, sW + 3))
    a("%s:" % lab)
def wo_touch(point):
    if point != OPT.get("wotp", 3): return
    lab = a.lab("L_wot")
    a("s_cmp_ge_u32 s%d, 2\ns_cbranch_scc1 %s" % (sWAVE, lab))
    a("s_lshr_b32 s%d, s2, 3\ns_lshl_b32 s%d, s%d, 14\ns_lshl_b32 s%d, s%d, 13\ns_add_u32 s%d, s%d, s%d" % (sT0, sT0, sT0, sT1, sWAVE, sT0, sT0, sT1))
    a("v_lshlrev_b32 v154, 7, v0\nv_add_u32 v154, s%d, v154" % sT0)
    a("buffer_load_dword v155, v154, s[%d:%d], 0 offen" % (sWO, sWO + 3))
    a("%s:" % lab)
if OPT.get("pace", 1): a("s_barrier")
touch_at(0)
if OPT.get("pace", 1) >= 2: a("s_barrier")
a("v_and_b32 v1, 15, v0\nv_lshrrev_b32 v2, 4, v0")
a("v_lshrrev_b32 v3, 1, v1")
a("v_xor_b32 v4, v3, v2")
a("v_lshlrev_b32 v5, 7, v1\nv_lshl_add_u32 v5, v4, 4, v5")
for s_ in range(3):
    a("v_add_u32 v%d, %d, v5" % (vXR + 2 * s_, s_ * SLOT))
    a("v_xor_b32 v%d, 64, v%d" % (vXR + 2 * s_ + 1, vXR + 2 * s_))
a("v_bfe_u32 v3, v0, 2, 2\nv_and_b32 v4, 3, v0")
a("v_lshl_add_u32 v5, v2, 3, v3\nv_lshlrev_b32 v5, 7, v5")
a("v_lshrrev_b32 v6, 1, v3\nv_and_b32 v7, 1, v2\nv_lshl_or_b32 v6, v7, 1, v6")
a("v_xor_b32 v6, s%d, v6" % sWAVE)
a("v_lshl_add_u32 v5, v6, 5, v5\nv_lshl_add_u32 v5, v4, 3, v5")
for s_ in range(3):
    a("v_add_u32 v%d, %d, v5" % (vWR + s_, s_ * SLOT + WOFF))
a("s_cmp_eq_u32 s%d, 0\ns_cbranch_scc0 L_mainB" % sBR)

def c_of(step): return step >> 1
KVF = OPT.get("kvf", 1)
def geom(br):
    if br == 0 and KVF: return 4, 32768, 16384, (lambda c: (c + 1) % 4)
    return 3, SLOT, WOFF, (lambda c: c % 3)
def main_loop(br, mid=None):
    NT = 9 if br else 8
    two = (br == 0 and KVF)
    NS = 32 if two else 16
    def parts(step):
        if br: return [(vQ, 0, True, False), (vK, 1, True, False), (vV, 2, False, False)]
        if not two: return [(vQ, 0, True, True), (vK, 1, False, True), (vV, 2, False, False)]
        if step < 16: return [(vK, 0, False, True), (vV, 1, False, False)]
        return [(vQ, 0, True, True)]
    lg = []
    NSL, SLB, WOF, slot_of = geom(br)
    if two:
        a("v_subrev_u32 v%d, %d, v%d" % (vWR, WOFF - WOF, vWR))
        a("v_add_u32 v%d, 0x10000, v%d\nv_add_u32 v%d, 0x10000, v%d\nv_add_u32 v%d, 0x10000, v%d" % (vXR + 2, vXR, vXR + 3, vXR + 1, vWR + 1, vWR))
    def rd_x(step, t):
        c, st = step >> 1, step & 1
        s_ = slot_of(c)
        if OPT.get("noxr", 0) and step > 0 and (t & 1): return
        if two: reg, off = vXR + 2 * (s_ >> 1) + st, (s_ & 1) * SLB
        else: reg, off = vXR + 2 * s_ + st, 0
        a("ds_read_b128 %s, v%d offset:%d" % (ar(aXF + 4 * t, 4), reg, off + t * 2048)); lg.append(("x", step, t))
    def rd_w(step, i):
        c, st = step >> 1, step & 1
        s_ = slot_of(c)
        part, rd = i >> 1, i & 1
        if two: reg, off = vWR + (s_ >> 1), (s_ & 1) * SLB
        else: reg, off = vWR + s_, 0
        a("ds_read_b64_tr_b16 %s, v%d offset:%d" % (ar(aWF + 12 * (step & 1) + 4 * part + 2 * rd, 2), reg, off + part * 8192 + st * 4096 + rd * 512)); lg.append(("w", step, i))
    def need(keys):
        last = -1
        for i, k in enumerate(lg):
            if k in keys: last = i
        if last >= 0:
            n = len(lg) - 1 - last
            a("s_waitcnt lgkmcnt(%d)" % min(n, 15))
            if n > 15: n = 15
            del lg[:len(lg) - n]
    if OPT.get("prio1", 0): a("s_setprio %d" % OPT["prio1"])
    a("s_barrier")
    stamp(2)
    touch_at(1)
    for i in range(2 * len(parts(0))): rd_w(0, i)
    for t in range(NT): rd_x(0, t)
    for step in range(NS):
        st = step & 1
        last = step == NS - 1
        first = step == 0 or (two and step == 16)
        P = parts(step)
        pend = [("w", i) for i in range(2 * len(parts(step + 1)))] if not last else []
        deferred = []
        SPREAD = OPT.get("spread", 1)
        def issue(item):
            kind, i = item
            rd_w(step + 1, i) if kind == "w" else rd_x(step + 1, i)
        barrier_done = (st == 0)
        wb = aWF + 12 * (step & 1)
        for t in range(NT):
            keys = [("x", step, t)]
            if t == 0: keys += [("w", step, i) for i in range(2 * len(P))]
            need(keys)
            xf = ar(aXF + 4 * t, 4)
            mf = []
            for (acc, wp, tr, eps) in P:
                if t == 8:
                    if acc == vQ: continue
                    d = vKH if acc == vK else vVH
                else:
                    d = acc + 4 * t
                wf = ar(wb + 4 * wp, 4)
                cop = (vr(vTMP, 4) if eps else "0") if first else vr(d, 4)
                mf.append("v_mfma_f32_16x16x32_bf16 %s, %s, %s, %s" % (vr(d, 4), wf if tr else xf, xf if tr else wf, cop))
            for mi, m in enumerate(mf):
                a(m)
                lastm = mi == len(mf) - 1
                if SPREAD and not lastm and barrier_done and not last and pend:
                    issue(pend.pop(0))
            if st == 1 and t <= 2:
                if not last: deferred.append(("x", t))
                if t == 2:
                    if two and step == 23: a("s_waitcnt vmcnt(0)")
                    a("s_waitcnt lgkmcnt(0)"); del lg[:]
                    if not OPT.get("nobar", 0): a("s_barrier")
                    touch_at(c_of(step) + 2)
                    wo_touch(c_of(step) + 2)
                    if OPT.get("bst", 0) and c_of(step) < 8: stamp(3 + c_of(step), True)
                    barrier_done = True
                    pend = pend + deferred if not last else []
                    if not last:
                        k = 0
                        while k < (2 if SPREAD else 3) and pend:
                            issue(pend.pop(0)); k += 1
                continue
            if last: continue
            if st == 1:
                pend.append(("x", t))
                k = 0
                while k < ((1 if len(mf) > 1 else 2) if SPREAD else 3) and pend:
                    issue(pend.pop(0)); k += 1
            else:
                rd_x(step + 1, t)
                if (not SPREAD or len(mf) == 1) and pend:
                    k = 0
                    while k < (2 if not SPREAD else 1) and pend:
                        issue(pend.pop(0)); k += 1
        while pend:
            issue(pend.pop(0))
        if two and step == 15:
            stamp(3)
            mid()
    a("s_waitcnt vmcnt(0)")
    if not two: stamp(3)
    if OPT.get("bst", 0): stamp(11, True)

def store_op(base0, npairs, first_pair=0):
    pass

def op_store_addr(vd):
    a("v_and_b32 v3, 1, v2\nv_lshlrev_b32 v3, 14, v3")
    a("v_lshrrev_b32 v4, 1, v2\nv_lshl_add_u32 v3, v4, 9, v3\nv_lshl_add_u32 v3, v1, 4, v3")
    a("s_lshl_b32 s%d, s%d, 17" % (sT0, sRT))
    a("s_lshl_b32 s%d, s%d, 11\ns_add_u32 s%d, s%d, s%d" % (sT1, sHG, sT0, sT0, sT1))
    a("s_lshr_b32 s%d, s%d, 1\ns_lshl_b32 s%d, s%d, 10\ns_add_u32 s%d, s%d, s%d" % (sT1, sWAVE, sT1, sT1, sT0, sT0, sT1))
    a("s_and_b32 s%d, s%d, 1\ns_lshl_b32 s%d, s%d, 8\ns_add_u32 s%d, s%d, s%d" % (sT1, sWAVE, sT1, sT1, sT0, sT0, sT1))
    a("s_lshl_b32 s%d, s%d, 21\ns_add_u32 s%d, s%d, s%d\ns_add_u32 s%d, s%d, 0x%x" % (sT1, sBR, sT0, sT0, sT1, sT0, sT0, WS_OP))
    a("v_add_u32 v%d, s%d, v3" % (vd, sT0))

vOPA = 7
vKVA = 6

a("L_mainA:")
a("v_mov_b32 v%d, 0x%x" % (vTMP, EPS))
for i in range(1, 4): a("v_mov_b32 v%d, v%d" % (vTMP + i, vTMP))
op_store_addr(vOPA)
a("s_lshl_b32 s%d, s%d, 2\ns_add_u32 s%d, s%d, s%d" % (sT0, sHG, sT0, sT0, sWAVE))
a("s_lshl_b32 s%d, s%d, 10\ns_add_u32 s%d, s%d, 0x%x" % (sT1, sT0, sT1, sT1, WS_KV))
a("v_lshl_add_u32 v%d, v0, 2, s%d" % (vKVA, sT1))
a("s_lshl_b32 s%d, s%d, 6\ns_add_u32 s%d, s%d, 0x%x" % (sT1, sT0, sT1, sT1, WS_Z))
a("v_lshl_add_u32 v5, v0, 2, s%d" % sT1)
a("s_mov_b32 s%d, 0x%x\ns_mov_b32 s%d, 0x%x\ns_mov_b32 s%d, 0x%x\ns_mov_b32 s%d, 0x%x" % (sC0, LOG2E, sC1, LOG2E, sC2, EPS, sC3, NEG_EPS_LOG2E))
def phi_stream(r0, dst, t0, t1):
    s = []
    for i in (0, 2):
        s.append("v_pk_fma_f32 v[%d:%d], v[%d:%d], s[%d:%d], v[2:3]" % (t0 + i, t0 + i + 1, r0 + i, r0 + i + 1, sC0, sC0 + 1))
    for i in range(4):
        s.append("v_exp_f32_e64 v%d, v%d clamp" % (t0 + i, t0 + i))
    for i in range(4):
        s.append("v_max_f32 v%d, s%d, v%d" % (r0 + i, sC2, r0 + i))
    for i in (0, 2):
        s.append("v_pk_add_f32 v[%d:%d], v[%d:%d], v[%d:%d]" % (r0 + i, r0 + i + 1, r0 + i, r0 + i + 1, t0 + i, t0 + i + 1))
    s.append("v_cvt_pk_bf16_f32 v%d, v%d, v%d" % (dst, r0, r0 + 1))
    s.append("v_cvt_pk_bf16_f32 v%d, v%d, v%d" % (dst + 1, r0 + 2, r0 + 3))
    return s

a("v_mov_b32 v2, s%d\nv_mov_b32 v3, s%d" % (sC3, sC3))
vQP = 144
vKP, vVP = (8, 24) if KVF else (112, 128)
ONES = 72
for i in range(4): a("v_mov_b32 v%d, 0x3f803f80" % (ONES + i))
def k_epilogue():
    for t in range(0, 8, 2):
        s0 = phi_stream(vK + 4 * t, vKP + 2 * t, 108, None)
        s1 = phi_stream(vK + 4 * (t + 1), vKP + 2 * (t + 1), 144, None)
        sv = ["v_cvt_pk_bf16_f32 v%d, v%d, v%d" % (vVP + 2 * tt + i, vV + 4 * tt + 2 * i, vV + 4 * tt + 2 * i + 1) for tt in (t, t + 1) for i in range(2)]
        for x in sched.interleave([s0, s1, sv]): a(x)
        acc_kv, acc_z = 76, 80
        cop = lambda r: "0" if t == 0 else vr(r, 4)
        a("v_mfma_f32_16x16x32_bf16 %s, %s, %s, %s" % (vr(acc_kv, 4), vr(vKP + 2 * t, 4), vr(vVP + 2 * t, 4), cop(acc_kv)))
        a("v_mfma_f32_16x16x32_bf16 %s, %s, %s, %s" % (vr(acc_z, 4), vr(ONES, 4), vr(vKP + 2 * t, 4), cop(acc_z)))
    for r in range(4):
        a("buffer_atomic_add_f32 v%d, v%d, s[%d:%d], 0 offen offset:%d%s" % (76 + r, vKVA, sWS, sWS + 3, r * 256, ATOM))
    a("s_mov_b64 s[%d:%d], exec\ns_mov_b64 exec, 0xffff" % (sSAVE, sSAVE + 1))
    a("buffer_atomic_add_f32 v80, v5, s[%d:%d], 0 offen%s" % (sWS, sWS + 3, ATOM))
    a("s_mov_b64 exec, s[%d:%d]" % (sSAVE, sSAVE + 1))
    stamp(4)
if KVF:
    main_loop(0, k_epilogue)
else:
    main_loop(0)
    k_epilogue()
for t in range(0, 8, 2):
    s0 = phi_stream(vQ + 4 * t, vQP + 2 * t, 108, None)
    s1 = phi_stream(vQ + 4 * (t + 1), vQP + 2 * (t + 1), 84, None)
    for x in sched.interleave([s0, s1]): a(x)
stamp(5)
a("v_lshrrev_b32 v2, 4, v0\nv_lshlrev_b32 v2, 4, v2")
a("s_lshl_b32 s%d, s%d, 2\ns_add_u32 s%d, s%d, s%d\ns_lshl_b32 s%d, s%d, 6\ns_add_u32 s%d, s%d, 0x%x\nv_add_u32 v5, s%d, v2" % (sT0, sHG, sT0, sT0, sWAVE, sT0, sT0, sT0, sT0, WS_Z, sT0))
a("s_mov_b32 s%d, 0x%x" % (sC2, EPS))
if not KVF:
    a("s_waitcnt vmcnt(0)")
    a("s_barrier")
a("s_barrier")
stamp(8)
for r in range(4):
    a("buffer_load_dword v%d, v%d, s[%d:%d], 0 offen offset:%d sc1" % (8 + r, vKVA, sWS, sWS + 3, r * 256))
a("buffer_load_dwordx4 v[12:15], v5, s[%d:%d], 0 offen sc1" % (sWS, sWS + 3))
a("s_waitcnt vmcnt(1)")
a("v_cvt_pk_bf16_f32 v16, v8, v9\nv_cvt_pk_bf16_f32 v17, v10, v11")
a("s_waitcnt vmcnt(0)")
a("v_cvt_pk_bf16_f32 v18, v12, v13\nv_cvt_pk_bf16_f32 v19, v14, v15")
stamp(6)
def ounit(t, T):
    N, DN, rv = T, T + 4, T + 8
    q = vQP + 2 * t
    s = []
    s.append("v_mfma_f32_16x16x16_bf16 %s, v[18:19], %s, 0" % (vr(DN, 4), vr(q, 2)))
    s.append("v_mfma_f32_16x16x16_bf16 %s, v[16:17], %s, 0" % (vr(N, 4), vr(q, 2)))
    s.append("v_add_f32 v%d, s%d, v%d" % (rv, sC2, DN))
    s.append("v_rcp_f32 v%d, v%d" % (rv, rv))
    for r in (0, 2): s.append("v_pk_mul_f32 v[%d:%d], v[%d:%d], v[%d:%d] op_sel_hi:[1,0]" % (N + r, N + r + 1, N + r, N + r + 1, rv, rv + 1))
    s.append("v_cvt_pk_bf16_f32 v%d, v%d, v%d" % (q, N, N + 1))
    s.append("v_cvt_pk_bf16_f32 v%d, v%d, v%d" % (q + 1, N + 2, N + 3))
    return s
for grp in range(2):
    for x in sched.interleave([ounit(4 * grp + i, 24 + 10 * i) for i in range(4)]): a(x)
    for u in (2 * grp, 2 * grp + 1):
        b = vQP + 4 * u
        a("v_permlane16_swap_b32 v%d, v%d\nv_permlane16_swap_b32 v%d, v%d" % (b, b + 2, b + 1, b + 3))
        a("s_mov_b32 s%d, %d" % (sT0, 2 * u * 16384))
        a("buffer_store_dwordx4 %s, v%d, s[%d:%d], s%d offen sc1" % (vr(b, 4), vOPA, sWS, sWS + 3, sT0))
stamp(4, False) if False else None
a("s_waitcnt vmcnt(0)")
a("s_barrier")
a("s_branch L_p2wait")

a("L_mainB:")
op_store_addr(vOPA)
a("v_lshlrev_b32 v3, 2, v2")
a("v_mov_b32 v6, 0x%x" % BIG)
for r in range(4):
    a("v_add_u32 v4, %d, v3" % r)
    a("v_sub_u32 v5, v1, v4")
    a("v_cmp_gt_u32 vcc, 8, v5")
    a("v_cndmask_b32_e64 v%d, v6, 0, vcc" % (vBC + r))
    if r % 2 == 0:
        a("v_cndmask_b32_e64 v%d, 0, -1, vcc\nv_and_b32 v%d, 0xffff, v%d" % (vMC + r // 2, vMC + r // 2, vMC + r // 2))
    else:
        a("v_cndmask_b32_e64 v5, 0, -1, vcc\nv_and_b32 v5, 0xffff0000, v5\nv_or_b32 v%d, v%d, v5" % (vMC + r // 2, vMC + r // 2))
    a("v_sub_u32 v5, v4, v1")
    a("v_cmp_le_i32 vcc, 9, v5")
    a("v_cndmask_b32_e64 v%d, v6, 0, vcc" % (vBP + r))
    a("v_cmp_le_i32 vcc, 1, v5\nv_cndmask_b32_e64 v%d, v6, 0, vcc" % (vBH0 + r))
    a("v_cmp_ge_u32 vcc, 7, v4\nv_cndmask_b32_e64 v%d, v6, v%d, vcc" % (vBH0 + r, vBH0 + r))
    a("v_mov_b32 v%d, v%d" % (vBH1 + r, vBP + r))
a("s_cmp_eq_u32 s%d, 0\ns_cbranch_scc0 L_nomask" % sRT)
for r in range(4):
    a("v_mov_b32 v%d, v6\nv_mov_b32 v%d, v6" % (vBH0 + r, vBH1 + r))
a("L_nomask:")
a("s_mov_b32 s%d, 0x%x\ns_mov_b32 s%d, 0x%x" % (sC0, SCALE_C, sC1, SCALE_C))
main_loop(1)
vVP = 140; vKPb = 76; vQPb = 94
def VP(p, u): return vVP + 10 * p + 2 * (u + 1)
def KP(t): return vKPb + 2 * t
def QP(t): return vQPb + 2 * t
pk = lambda d, s: ["v_cvt_pk_bf16_f32 v%d, v%d, v%d" % (d, s, s + 1), "v_cvt_pk_bf16_f32 v%d, v%d, v%d" % (d + 1, s + 2, s + 3)]
for t in range(8):
    for x in pk(VP(t & 1, t >> 1), vV + 4 * t): a(x)
for x in pk(VP(0, -1), vVH): a(x)
a("v_mov_b32 v%d, v%d\nv_mov_b32 v%d, v%d" % (VP(1, -1), VP(0, -1), VP(1, -1) + 1, VP(0, -1) + 1))
for t in range(8):
    for x in pk(KP(t), vK + 4 * t): a(x)
for x in pk(KP(8), vKH): a(x)
for t in range(8):
    for x in pk(QP(t), vQ + 4 * t): a(x)
ONESB = 110
ONESB = 112
for i in range(4): a("v_mov_b32 v%d, 0x3f803f80" % (ONESB + i))
def unit(t, T):
    p, u = t & 1, t >> 1
    SP, SC, SM, m0, m1 = T, T + 4, T + 8, T + 12, T + 13
    tp = 8 if u == 0 else t - 2
    bias = (vBH0 if p == 0 else vBH1) if u == 0 else vBP
    s = []
    s.append("v_mfma_f32_16x16x16_bf16 %s, %s, %s, %s" % (vr(SP, 4), vr(KP(tp), 2), vr(QP(t), 2), vr(bias, 4)))
    s.append("v_mfma_f32_16x16x16_bf16 %s, %s, %s, %s" % (vr(SC, 4), vr(KP(t), 2), vr(QP(t), 2), vr(vBC, 4)))
    for r in range(4): s.append("v_max_f32 v%d, v%d, v%d" % (SC + r, SC + r, SP + r))
    s.append("v_max3_f32 v%d, v%d, v%d, v%d" % (m0, SC, SC + 1, SC + 2))
    s.append("v_max_f32 v%d, v%d, v%d" % (m0, m0, SC + 3))
    s.append("v_mov_b32 v%d, v%d" % (m1, m0))
    s.append("v_permlane16_swap_b32 v%d, v%d" % (m0, m1))
    s.append("v_max_f32 v%d, v%d, v%d" % (m0, m0, m1))
    s.append("v_mov_b32 v%d, v%d" % (m1, m0))
    s.append("v_permlane32_swap_b32 v%d, v%d" % (m0, m1))
    s.append("v_max_f32 v%d, v%d, v%d" % (m0, m0, m1))
    s.append("v_mul_f32 v%d, s%d, v%d" % (m0, sC0, m0))
    for r in (0, 2): s.append("v_pk_fma_f32 v[%d:%d], v[%d:%d], s[%d:%d], v[%d:%d] op_sel_hi:[1,1,0] neg_lo:[0,0,1] neg_hi:[0,0,1]" % (SC + r, SC + r + 1, SC + r, SC + r + 1, sC0, sC0 + 1, m0, m0 + 1))
    for r in range(4): s.append("v_exp_f32 v%d, v%d" % (SC + r, SC + r))
    s.append("v_cvt_pk_bf16_f32 v%d, v%d, v%d" % (SC, SC, SC + 1))
    s.append("v_cvt_pk_bf16_f32 v%d, v%d, v%d" % (SC + 1, SC + 2, SC + 3))
    s.append("v_and_b32 v%d, v%d, v%d" % (SP + 2, SC, vMC))
    s.append("v_and_b32 v%d, v%d, v%d" % (SP + 3, SC + 1, vMC + 1))
    s.append("v_xor_b32 v%d, v%d, v%d" % (SP, SC, SP + 2))
    s.append("v_xor_b32 v%d, v%d, v%d" % (SP + 1, SC + 1, SP + 3))
    s.append("v_mfma_f32_16x16x32_bf16 %s, %s, %s, 0" % (vr(SM, 4), vr(ONESB, 4), vr(SP, 4)))
    s.append("v_mfma_f32_16x16x32_bf16 %s, %s, %s, 0" % (vr(SC, 4), vr(VP(p, u - 1), 4), vr(SP, 4)))
    s.append("v_rcp_f32 v%d, v%d" % (m0, SM))
    for r in (0, 2): s.append("v_pk_mul_f32 v[%d:%d], v[%d:%d], v[%d:%d] op_sel_hi:[1,0]" % (SC + r, SC + r + 1, SC + r, SC + r + 1, m0, m0 + 1))
    s.append("v_cvt_pk_bf16_f32 v%d, v%d, v%d" % (QP(t), SC, SC + 1))
    s.append("v_cvt_pk_bf16_f32 v%d, v%d, v%d" % (QP(t) + 1, SC + 2, SC + 3))
    return s
for grp in range(2):
    ss = [unit(4 * grp + i, 8 + 16 * i) for i in range(4)]
    for x in sched.interleave(ss): a(x)
    for u in (2 * grp, 2 * grp + 1):
        b = QP(2 * u)
        a("v_permlane16_swap_b32 v%d, v%d\nv_permlane16_swap_b32 v%d, v%d" % (b, b + 2, b + 1, b + 3))
        a("s_mov_b32 s%d, %d" % (sT0, 2 * u * 16384))
        a("buffer_store_dwordx4 %s, v%d, s[%d:%d], s%d offen sc1" % (vr(b, 4), vOPA, sWS, sWS + 3, sT0))
stamp(5)
a("s_waitcnt vmcnt(0)")
a("s_barrier")
a("s_branch L_p2wait")

a("L_loader:")
a("v_lshrrev_b32 v1, 3, v0\nv_and_b32 v2, 7, v0")
vXS, vHS, vWS_, vWOS = 8, 10, 12, 14
a("v_lshrrev_b32 v3, 1, v1")
for mh in range(2):
    a("v_or_b32 v4, %d, v3\nv_xor_b32 v4, v4, v2\nv_lshlrev_b32 v4, 4, v4" % (4 * mh))
    a("v_lshl_add_u32 v4, v1, 11, v4\nv_add_u32 v%d, %d, v4" % (vXS + mh, mh * 16 * 1024))
a("s_lshl_b32 s%d, s%d, 2\nv_add_u32 v4, s%d, v1" % (sT0, sLW, sT0))
a("v_and_b32 v5, 7, v4\nv_lshlrev_b32 v5, 1, v5\nv_lshrrev_b32 v6, 3, v4\nv_add_u32 v5, v5, v6")
a("s_lshl_b32 s%d, s%d, 7\ns_sub_u32 s%d, s%d, 16\nv_add_u32 v5, s%d, v5\nv_max_i32 v5, 0, v5" % (sT0, sRT, sT0, sT0, sT0))
a("v_lshrrev_b32 v6, 1, v4\nv_and_b32 v6, 7, v6\nv_xor_b32 v6, v6, v2\nv_lshlrev_b32 v6, 4, v6\nv_lshl_add_u32 v%d, v5, 10, v6" % vHS)
a("v_and_b32 v4, 1, v3\nv_lshrrev_b32 v5, 1, v2\nv_and_b32 v6, 1, v2")
a("v_mul_u32_u24 v7, 3072, v1")
for kp in range(2):
    a("v_or_b32 v16, %d, v4\nv_xor_b32 v16, v16, v5\nv_lshlrev_b32 v16, 5, v16\nv_lshl_add_u32 v16, v6, 4, v16" % (2 * kp))
    a("v_add_u32 v16, v16, v7\nv_add_u32 v%d, %d, v16" % (vWS_ + kp, kp * 8 * 3072))
a("v_lshrrev_b32 v3, 4, v0\nv_bfe_u32 v4, v0, 1, 3\nv_and_b32 v5, 1, v0")
a("s_lshl_b32 s%d, s%d, 8" % (sT0, sCT))
for b in range(2):
    a("v_or_b32 v6, %d, v3\nv_xor_b32 v6, v6, v4\nv_lshlrev_b32 v6, 5, v6\nv_lshl_add_u32 v6, v5, 4, v6" % (4 * b))
    a("v_lshl_add_u32 v6, v3, 10, v6\nv_add_u32 v%d, s%d, v6" % (vWOS + b, sT0))

a("v_and_b32 v25, 7, v0\nv_lshlrev_b32 v25, 2, v25\nv_add_u32 v25, 128, v25\nv_mov_b32 v24, 0")
def dma(vaddr, srd_, soff, ldsreg_or_imm):
    a("s_mov_b32 m0, %s" % ldsreg_or_imm)
    a("buffer_load_dwordx4 v%d, s[%d:%d], s%d offen lds" % (vaddr, srd_, srd_ + 3, soff))

def loader(br):
    n = 11 if br else 10
    sLX, sLH, sLWb = 74, 75, 67
    a("s_lshl_b32 s%d, s%d, 12" % (sLX, sLW))
    a("s_lshl_b32 s%d, s%d, 9\ns_add_u32 s%d, s%d, 16384" % (sLH, sLW, sLH, sLH))
    NSL, SLB, WOF, slot_of = geom(br)
    a("s_lshl_b32 s%d, s%d, 11\ns_add_u32 s%d, s%d, %d" % (sLWb, sLW, sLWb, sLWb, WOF))
    a("s_lshl_b32 s%d, s%d, 17\ns_lshl_b32 s%d, s%d, 15\ns_add_u32 s18, s%d, s%d" % (sT0, sRT, sT1, sLW, sT0, sT1))
    a("s_mul_i32 s%d, s%d, %d\ns_lshl_b32 s%d, s%d, 7\ns_add_u32 s19, s%d, s%d" % (sT0, sLW, 16 * 3072, sT1, sHG, sT0, sT1))
    two = (br == 0 and KVF)
    NCH = 16 if two else 8
    def nld(c):
        if br: return 11
        if not two: return 10
        return 8 if c < 8 else 6
    def chunk(c):
        sl = slot_of(c) * SLB
        a("s_add_u32 s%d, s%d, %d\ns_and_b32 s%d, s%d, 7" % (sKC, sROT, c, sKC, sKC))
        a("s_lshl_b32 s%d, s%d, 7" % (sH, sKC))
        a("s_add_u32 s%d, s18, s%d\ns_add_u32 s%d, s%d, 1024" % (sX0, sH, sX1, sX0))
        a("s_mul_i32 s%d, s%d, %d\ns_add_u32 s%d, s19, s%d" % (sW0, sKC, 64 * 3072, sW0, sW0))
        a("s_add_u32 s%d, s%d, 1024\ns_add_u32 s%d, s%d, 2048" % (sW1, sW0, sW2, sW0))
        srcs = (sW0, sW1, sW2) if not two else ((sW1, sW2) if c < 8 else (sW0,))
        def wpart():
          for part, sw in enumerate(srcs):
            for kp in range(2):
                a("s_add_u32 m0, s%d, %d" % (sLWb, sl + part * 8192 + kp * 1024))
                a("buffer_load_dwordx4 v%d, s[%d:%d], s%d offen%s lds" % (vWS_ + kp, sW, sW + 3, sw, NTW))
        xfirst = OPT.get("xfirst", 0) and c >= 1
        if not xfirst: wpart()
        for pp, sx in enumerate((sX0, sX1)):
            for mh in range(2):
                a("s_add_u32 m0, s%d, %d" % (sLX, sl + pp * 2048 + mh * 1024))
                a("buffer_load_dwordx4 v%d, s[%d:%d], s%d offen%s lds" % (vXS + mh, sX, sX + 3, sx, NTX))
        if br:
            a("s_add_u32 m0, s%d, %d" % (sLH, sl))
            a("s_mov_b32 exec_hi, 0")
            a("buffer_load_dwordx4 v%d, s[%d:%d], s%d offen lds" % (vHS, sX, sX + 3, sH))
            a("s_mov_b32 exec_hi, -1")
        if xfirst: wpart()
    def wo(n0, n1):
        for nn in range(n0, n1):
            a("s_lshl_b32 s%d, s%d, 12\ns_add_u32 s%d, s%d, %d" % (sT0, sLW, sT0, sT0, nn * 16384))
            a("s_lshl_b32 s%d, s%d, 10\ns_add_u32 m0, s%d, %d" % (sT1, sLW, sT1, WO_BASE + nn * 4096))
            a("buffer_load_dwordx4 v%d, s[%d:%d], s%d offen lds" % (vWOS + (nn & 1), sWO, sWO + 3, sT0))
    if br == 0:
        a("s_cmp_eq_u32 s%d, 0\ns_cbranch_scc0 L_noinit" % sRT)
        a("s_lshl_b32 s%d, s%d, 2\ns_add_u32 s%d, s%d, s%d" % (sT0, sHG, sT0, sT0, sLW))
        a("s_lshl_b32 s%d, s%d, 10\ns_add_u32 s%d, s%d, 0x%x" % (sT1, sT0, sT1, sT1, WS_KV))
        a("v_lshl_add_u32 v16, v0, 4, s%d" % sT1)
        a("v_mov_b32 v20, 0\nv_mov_b32 v21, 0\nv_mov_b32 v22, 0\nv_mov_b32 v23, 0")
        a("buffer_store_dwordx4 v[20:23], v16, s[%d:%d], 0 offen sc1" % (sWS, sWS + 3))
        a("s_lshl_b32 s%d, s%d, 6\ns_add_u32 s%d, s%d, 0x%x" % (sT1, sT0, sT1, sT1, WS_Z))
        a("s_lshl_b32 s%d, s%d, 8\ns_add_u32 s%d, s%d, %d\ns_sub_u32 s%d, s%d, 64" % (sT2, sT0, sT2, sT2, WS_FLAG, sT2, sT2))
        a("v_lshl_add_u32 v17, v0, 4, s%d\nv_lshl_add_u32 v18, v0, 4, s%d" % (sT1, sT2))
        a("s_lshl_b32 s%d, s%d, 8\ns_add_u32 s%d, s%d, %d\nv_lshl_add_u32 v19, v0, 4, s%d" % (sT2, sHG, sT2, sT2, WS_FLAG + 32 * 256 - 20 * 16, sT2))
        a("v_cmp_gt_u32 vcc, 4, v0\nv_cndmask_b32 v17, v18, v17, vcc")
        a("v_cmp_gt_u32 vcc, 20, v0\nv_cndmask_b32 v17, v19, v17, vcc")
        a("s_mov_b64 s[%d:%d], exec\ns_mov_b64 exec, 0xffffff" % (sSAVE, sSAVE + 1))
        a("buffer_store_dwordx4 v[20:23], v17, s[%d:%d], 0 offen sc1" % (sWS, sWS + 3))
        a("s_mov_b64 exec, s[%d:%d]" % (sSAVE, sSAVE + 1))
        a("L_noinit:")
    def flag_store(vaddr):
        lab = a.lab("L_nf")
        a("s_cmp_eq_u32 s%d, 0\ns_cbranch_scc0 %s" % (sLW, lab))
        a("s_mov_b64 s[%d:%d], exec\ns_mov_b64 exec, 1" % (sSAVE, sSAVE + 1))
        a("buffer_store_dword v17, v%d, s[%d:%d], 0 offen sc1" % (vaddr, sWS, sWS + 3))
        a("s_mov_b64 exec, s[%d:%d]" % (sSAVE, sSAVE + 1))
        a("%s:" % lab)
    a("s_lshl_b32 s%d, s%d, 8\ns_lshl_b32 s%d, s%d, 2\ns_add_u32 s%d, s%d, s%d\ns_add_u32 s%d, s%d, %d" % (sT0, sRT, sT1, sHG, sT0, sT0, sT1, sT0, sT0, WS_FLAG + br * 4096))
    a("v_mov_b32 v16, s%d\nv_mov_b32 v17, 1" % sT0)
    if br == 0:
        a("s_lshl_b32 s%d, s%d, 8\ns_add_u32 s%d, s%d, %d\ns_lshl_b32 s%d, s%d, 2\ns_add_u32 s%d, s%d, s%d" % (sT0, sHG, sT0, sT0, WS_FLAG + 32 * 256, sT1, sRT, sT1, sT0, sT1))
        a("v_mov_b32 v18, s%d\nv_and_b32 v19, 15, v0\nv_lshl_add_u32 v19, v19, 2, s%d" % (sT1, sT0))
    PRE = OPT.get("pre", 3)
    L = NCH - 1
    issued = []
    def do_chunk(c):
        chunk(c); issued.extend([("ch", c)] * nld(c))
    def do_wo(n0, n1):
        wo(n0, n1); issued.extend([("wo", n0)] * (n1 - n0))
    def wait_for(tag):
        last = max(i for i, t in enumerate(issued) if t == tag)
        a("s_waitcnt vmcnt(%d)" % (len(issued) - 1 - last))
    do_chunk(0)
    if OPT.get("pace", 1): a("s_barrier")
    if PRE >= 2: do_chunk(1)
    if OPT.get("pace", 1) >= 2: a("s_barrier")
    if PRE >= 3: do_chunk(2)
    AH = NSL - 1
    INI = 6 if two else L
    for c in range(NCH):
        if not (OPT.get("nodma", 0) and c >= 3): wait_for(("ch", c))
        if c == INI + (1 if two else 0):
            lab = a.lab("L_ini")
            a("s_cmp_eq_u32 s%d, 0\ns_cbranch_scc0 %s_x" % (sLW, lab))
            a("s_mov_b32 s%d, 0" % sCNT)
            a("%s:" % lab)
            a("v_cmp_eq_u32 vcc, 1, v24\ns_cmp_eq_u64 vcc, -1\ns_cbranch_scc1 %s_x" % lab)
            a("s_add_u32 s%d, s%d, 1\ns_cmp_gt_u32 s%d, 100000\ns_cbranch_scc1 %s_x" % (sCNT, sCNT, sCNT, lab))
            a("buffer_load_dword v24, v25, s[%d:%d], 0 offen sc1\ns_waitcnt vmcnt(0)\ns_branch %s" % (sDBG, sDBG + 3, lab))
            a("%s_x:" % lab)
        if c == 0 or not OPT.get("nobar", 0): a("s_barrier")
        if c == 0 and br == 0:
            lab = a.lab("L_ifl")
            a("s_cmp_eq_u32 s%d, 0\ns_cbranch_scc0 %s\ns_cmp_eq_u32 s%d, 0\ns_cbranch_scc0 %s" % (sRT, lab, sLW, lab))
            a("s_lshl_b32 s%d, s%d, 2\ns_add_u32 s%d, s%d, 128\nv_mov_b32 v20, s%d\nv_mov_b32 v21, 1" % (sT0, sHG, sT0, sT0, sT0))
            a("s_mov_b64 s[%d:%d], exec\ns_mov_b64 exec, 1" % (sSAVE, sSAVE + 1))
            a("buffer_store_dword v21, v20, s[%d:%d], 0 offen sc1" % (sDBG, sDBG + 3))
            a("s_mov_b64 exec, s[%d:%d]" % (sSAVE, sSAVE + 1))
            a("%s:" % lab)
        if two and c == 12: flag_store(18)
        if c == 4:
            lab = a.lab("L_dbg")
            a("s_cmp_eq_u32 s%d, 0\ns_cbranch_scc0 %s" % (sLW, lab))
            a("buffer_load_dword v24, v25, s[%d:%d], 0 offen sc1" % (sDBG, sDBG + 3))
            a("%s:" % lab)
        if c == 0:
            for cc in range(PRE, NSL): do_chunk(cc)
        if 1 <= c and c + AH <= L and not OPT.get("nodma", 0): do_chunk(c + AH)
        if two:
            if c == L - 3: do_wo(24, 32)
            if c == L - 2: do_wo(0, 8)
            if c == L - 1: do_wo(8, 16)
            if c == L: do_wo(16, 24)
        else:
            if c == L - 2: do_wo(24, 32)
            if c == L - 1: do_wo(13, 24)
            if c == L: do_wo(0, 2)
    if not OPT.get("nobar", 0): a("s_barrier")
    if br == 0:
        if not two:
            a("s_barrier")
            flag_store(18)
        lab = a.lab("L_kp")
        a("s_cmp_eq_u32 s%d, 0\ns_cbranch_scc1 %s_p" % (sLW, lab))
        if not two: wo(2, 13)
        a("s_branch %s_x" % lab)
        a("%s_p:\ns_mov_b32 s%d, 0" % (lab, sCNT))
        stamp(3)
        a("%s:" % lab)
        a("buffer_load_dword v20, v19, s[%d:%d], 0 offen sc1\ns_waitcnt vmcnt(0)" % (sWS, sWS + 3))
        a("v_cmp_eq_u32 vcc, 1, v20\ns_cmp_eq_u64 vcc, -1\ns_cbranch_scc1 %s_x" % lab)
        a("s_add_u32 s%d, s%d, 1\ns_cmp_gt_u32 s%d, 100000\ns_cbranch_scc1 %s_x" % (sCNT, sCNT, sCNT, lab))
        if OPT["sleep"]: a("s_sleep %d" % OPT["sleep"])
        a("s_branch %s" % lab)
        a("%s_x:" % lab)
        a("s_barrier")
        if not two:
            a("s_cmp_eq_u32 s%d, 0\ns_cbranch_scc0 %s_y" % (sLW, lab))
            wo(2, 13)
            a("%s_y:" % lab)
    elif not OPT.get("wolate", 0):
        wo(2, 13)
    a("s_barrier")
    stamp(5)
    flag_store(16)
    if br and OPT.get("wolate", 0): wo(2, 13)
    a("s_branch L_p2wait")

def poll(br):
    lab = a.lab("L_fl")
    a("s_cmp_eq_u32 s%d, 4\ns_cbranch_scc0 %s_x" % (sWAVE, lab))
    a("s_mov_b32 s%d, 0" % sCNT)
    a("s_lshr_b32 s%d, s%d, 1\ns_lshl_b32 s%d, s%d, 8\ns_lshl_b32 s%d, s%d, 12\ns_add_u32 s%d, s%d, s%d" % (sT0, sRB, sT0, sT0, sT1, sBR, sT0, sT0, sT1))
    if WS_FLAG: a("s_add_u32 s%d, s%d, %d" % (sT0, sT0, WS_FLAG))
    a("v_and_b32 v60, 7, v0\nv_lshl_add_u32 v60, v60, 2, s%d" % sT0)
    a("%s:" % lab)
    a("buffer_load_dword v61, v60, s[%d:%d], 0 offen sc1\ns_waitcnt vmcnt(0)" % (sWS, sWS + 3))
    a("v_cmp_eq_u32 vcc, 1, v61")
    a("s_cmp_eq_u64 vcc, -1\ns_cbranch_scc1 %s_x" % lab)
    a("s_add_u32 s%d, s%d, 1\ns_cmp_gt_u32 s%d, 100000\ns_cbranch_scc1 %s_x" % (sCNT, sCNT, sCNT, lab))
    if OPT["sleep"]: a("s_sleep %d" % OPT["sleep"])
    a("s_branch %s" % lab)
    a("%s_x:" % lab)

a("s_cmp_eq_u32 s%d, 0\ns_cbranch_scc0 L_loaderB" % sBR)
loader(0)
a("L_loaderB:")
loader(1)

a("L_p2wait:")
a("s_cmp_ge_u32 s%d, 4\ns_cbranch_scc1 L_p2load" % sWAVE)
vACC, vOPF, vWA, vOUT, vOPR = 8, 40, 72, 76, 77
a("v_and_b32 v1, 15, v0\nv_lshrrev_b32 v2, 4, v0")
a("v_bfe_u32 v3, v0, 2, 2\nv_and_b32 v4, 3, v0\nv_and_b32 v5, 1, v2")
a("v_lshl_or_b32 v6, v5, 2, v3\nv_lshlrev_b32 v6, 5, v6\nv_lshl_add_u32 v6, v4, 3, v6")
a("v_lshrrev_b32 v7, 1, v2\nv_lshlrev_b32 v7, 3, v7\nv_lshl_add_u32 v7, v5, 4, v7\nv_add_u32 v7, v7, v3")
a("v_lshl_add_u32 v6, v7, 8, v6\nv_add_u32 v6, %d, v6" % WO_BASE)
a("s_lshl_b32 s%d, s%d, 6\nv_xor_b32 v%d, s%d, v6\nv_xor_b32 v%d, 32, v%d" % (sT0, sWAVE, vWA, sT0, vWA + 1, vWA))
a("v_add_u32 v%d, 0x10000, v%d\nv_add_u32 v%d, 0x10000, v%d" % (vWA + 2, vWA, vWA + 3, vWA + 1))
def WF(c, j):
    i = c * 16 + j
    return ("a", 4 * i) if i < 24 else ("v", 112 + 4 * (i - 24))
def wfr(c, j, o, n):
    k, b = WF(c, j)
    return (ar if k == "a" else vr)(b + o, n)
a("s_barrier")
for j in range(16):
    for c in range(2):
        for rd in range(2):
            a("ds_read_b64_tr_b16 %s, v%d offset:%d" % (wfr(c, j, 2 * rd, 2), vWA + c + 2 * (j >> 3), (j & 7) * 8192 + rd * 1024))
a("s_lshl_b32 s%d, s%d, 17\ns_lshl_b32 s%d, s%d, 10\ns_add_u32 s%d, s%d, s%d\ns_lshl_b32 s%d, s%d, 8\ns_add_u32 s%d, s%d, s%d\ns_lshl_b32 s%d, s%d, 6\ns_add_u32 s%d, s%d, s%d" % (sT2, sRB, sT3, sBR, sT2, sT2, sT3, sT3, sCT, sT2, sT2, sT3, sT3, sWAVE, sT2, sT2, sT3))
a("v_lshlrev_b32 v3, 12, v1\nv_and_b32 v4, 1, v2\nv_lshl_add_u32 v3, v4, 5, v3\nv_lshrrev_b32 v4, 1, v2\nv_lshl_add_u32 v3, v4, 4, v3\nv_add_u32 v%d, s%d, v3" % (vOUT, sT2))
a("v_lshlrev_b32 v%d, 4, v0" % vOPR)
a("s_mov_b32 s%d, 2048\ns_mov_b32 s%d, 0x10000\ns_mov_b32 s%d, 0x10800" % (sT3, sT4, sT5))
ALL8 = OPT.get("all8", 0)
def op_src_setup(vd, srg):
    a("s_lshl_b32 s%d, s%d, 2\ns_add_u32 s%d, s%d, s%d\ns_lshl_b32 s%d, s%d, 14\ns_lshl_b32 s%d, s%d, 21\ns_add_u32 s%d, s%d, s%d\ns_add_u32 s%d, s%d, 0x%x" % (sT2, sRB, sT2, sT2, srg, sT2, sT2, sT0, sBR, sT2, sT2, sT0, sT2, sT2, WS_OP))
    a("v_lshl_add_u32 v%d, v0, 4, s%d" % (vd, sT2))
    a("s_lshl_b32 s%d, s%d, 14" % (sM, srg))
def op_dma(vd, js):
    for j in js:
        a("s_add_u32 m0, s%d, %d\ns_mov_b32 s%d, %d" % (sM, j * 1024, sT2, j * 1024))
        a("buffer_load_dwordx4 v%d, s[%d:%d], s%d offen sc1 lds" % (vd, sWS, sWS + 3, sT2))
if ALL8: op_src_setup(78, sWAVE)
a("s_waitcnt lgkmcnt(0)")
a("s_barrier")
stamp(7)
if ALL8: op_dma(78, range(0, 16, 2))
dq = sched.DsQueue(a)
def op_read(j):
    return ["ds_read_b128 %s, v%d offset:%d" % (vr(vOPF + 16 * (j & 1) + 4 * rg, 4), vOPR, rg * 16384 + j * 1024) for rg in range(4)]
GRP = [0, 4, 8, 12]
if ALL8: a("s_waitcnt vmcnt(6)")
a("s_barrier")
for x in op_read(0): dq(x)
for j in range(16):
    nxt = []
    if j < 15:
        if (j + 1) in GRP:
            if ALL8: a("s_waitcnt vmcnt(%d)" % (6 - 2 * GRP.index(j + 1)))
            a("s_barrier")
        nxt = op_read(j + 1)
    for rg in range(4):
        for c in range(2):
            dq("v_mfma_f32_16x16x32_bf16 %s, %s, %s, %s" % (vr(vACC + 8 * rg + 4 * c, 4), wfr(c, j, 0, 4), vr(vOPF + 16 * (j & 1) + 4 * rg, 4), "0" if j == 0 else vr(vACC + 8 * rg + 4 * c, 4)))
        if nxt: dq(nxt[rg])
stamp(9)
for rg in range(4):
    b = 40 + 4 * rg
    for c in range(2):
        r0 = vACC + 8 * rg + 4 * c
        a("v_cvt_pk_bf16_f32 v%d, v%d, v%d\nv_cvt_pk_bf16_f32 v%d, v%d, v%d" % (b + 2 * c, r0, r0 + 1, b + 2 * c + 1, r0 + 2, r0 + 3))
    a("v_permlane16_swap_b32 v%d, v%d\nv_permlane16_swap_b32 v%d, v%d" % (b, b + 2, b + 1, b + 3))
    a("buffer_store_dwordx4 %s, v%d, s[%d:%d], %s offen%s" % (vr(b, 4), vOUT, sOUT, sOUT + 3, ["0", "s%d" % sT3, "s%d" % sT4, "s%d" % sT5][rg], ["", " sc1", " nt", " sc0 sc1", " sc1 nt"][OPT.get("outst", 1)]))
a("s_branch L_fin")

a("L_p2load:")
op_src_setup(8, sLW)
a("s_waitcnt vmcnt(0)")
a("s_barrier")
stamp(4)
poll(0)
a("s_barrier")
stamp(7)
if OPT.get("regst", 0):
    a("v_lshlrev_b32 v9, 4, v0\nv_add_u32 v9, s%d, v9" % sM)
    a("s_movk_i32 s%d, 0x1000\ns_movk_i32 s%d, 0x2000\ns_movk_i32 s%d, 0x3000" % (sT3, sT4, sT5))
    for j in range(16):
        a("buffer_load_dwordx4 %s, v8, s[%d:%d], %s offen offset:%d sc1" % (vr(12 + 4 * j, 4), sWS, sWS + 3, ["0", "s%d" % sT3, "s%d" % sT4, "s%d" % sT5][j >> 2], (j & 3) * 1024))
else:
    op_dma(8, range(1, 16, 2) if ALL8 else range(16))
for g in range(4):
    if OPT.get("regst", 0):
        for j in range(4 * g, 4 * g + 4):
            a("s_waitcnt vmcnt(%d)" % (15 - j))
            a("ds_write_b128 v9, %s offset:%d" % (vr(12 + 4 * j, 4), j * 1024))
        a("s_waitcnt lgkmcnt(0)")
    else:
        a("s_waitcnt vmcnt(%d)" % ((6 - 2 * g) if ALL8 else (12 - 4 * g)))
    a("s_barrier")
    if g == 0: stamp(8)
    if g == 3: stamp(9)
a("L_fin:")
if STAMPS:
    stamp(10)
    a("s_waitcnt vmcnt(0)")
    stamp(11)
    a("s_waitcnt lgkmcnt(0)")
    if STAMPS == 3:
        a("s_cmp_eq_u32 s2, %d\ns_cbranch_scc0 L_end\ns_cmp_eq_u32 s%d, 0\ns_cbranch_scc0 L_end" % (OPT.get("ampwg", 0), sWAVE))
        a("s_sub_u32 s%d, s%d, s%d\ns_mul_i32 s%d, s%d, %d" % (sT0, sSTB + 2 * OPT["ampb"], sSTB + 2 * OPT["ampa"], sT0, sT0, OPT["amp"]))
        a("s_add_u32 s%d, s%d, s%d" % (sT0, sT0, sSTB + 22))
        a("s_mov_b32 s%d, 0" % sCNT)
        a("L_amp:\ns_memrealtime s[%d:%d]\ns_waitcnt lgkmcnt(0)\ns_add_u32 s%d, s%d, 1\ns_cmp_gt_u32 s%d, 200000\ns_cbranch_scc1 L_end" % (sT2, sT3, sCNT, sCNT, sCNT))
        a("s_sub_u32 s%d, s%d, s%d\ns_cmp_lt_i32 s%d, 0\ns_cbranch_scc1 L_amp\ns_branch L_end" % (sT1, sT2, sT0, sT1))
    if STAMPS == 2:
        a("s_and_b32 s%d, s%d, 3\ns_cmp_eq_u32 s%d, 0\ns_cbranch_scc0 L_end" % (sT0, sWAVE, sT0))
        a("s_mov_b64 exec, 1")
        a("s_not_b32 s%d, s%d" % (sSTB, sSTB))
        for j in range(NSTAMP):
            a("v_mov_b32 v6, s%d\nv_mov_b32 v5, %d" % (sSTB + 2 * j, 4 * j))
            a("buffer_atomic_umax v6, v5, s[%d:%d], 0 offen sc1" % (sDBG, sDBG + 3))
        a("s_lshl_b32 s%d, s%d, 2\ns_add_u32 s%d, s%d, 48\nv_mov_b32 v5, s%d\nv_mov_b32 v6, s%d" % (sT0, sBR, sT0, sT0, sT0, sSTB + 22))
        a("buffer_atomic_umax v6, v5, s[%d:%d], 0 offen sc1" % (sDBG, sDBG + 3))
        a("s_branch L_end")
    a("s_and_b32 s%d, s%d, 3\ns_cmp_eq_u32 s%d, 0\ns_cbranch_scc0 L_end" % (sT0, sWAVE, sT0))
    a("s_lshr_b32 s%d, s%d, 2\ns_lshl_b32 s%d, s2, 1\ns_add_u32 s%d, s%d, s%d\ns_mul_i32 s%d, s%d, %d\ns_add_u32 s%d, s%d, 0x%x" % (sT0, sWAVE, sT1, sT0, sT0, sT1, sT0, sT0, NSTAMP * 8, sT0, sT0, WS_STAMP))
    a("v_mov_b32 v5, s%d" % sT0)
    for j in range(NSTAMP):
        a("v_mov_b32 v6, s%d\nv_mov_b32 v7, s%d" % (sSTB + 2 * j, sSTB + 2 * j + 1))
        a("buffer_store_dwordx2 v[6:7], v5, s[%d:%d], 0 offen offset:%d" % (sWS, sWS + 3, 8 * j))
a("L_end:\ns_endpgm")

body = a.finalize()
hdr = open("concat_heads__linear_attn_block__sliding_local_dilated__prompt.s.ref").read().split("; Override launch")[0]
txt = hdr + "; @launch grid=(256,1,1) block=(512,1,1) lds=%d\n" % LDS_BYTES
txt += '.amdgcn_target "amdgcn-amd-amdhsa--gfx950"\n.text\n.globl %s\n.p2align 8\n.type %s,@function\n%s:\n' % (KN, KN, KN)
txt += body
txt += ('.section .rodata,"a"\n.p2align 6\n.amdhsa_kernel %s\n  .amdhsa_next_free_vgpr 256\n  .amdhsa_next_free_sgpr 102\n'
        '  .amdhsa_accum_offset 160\n  .amdhsa_group_segment_fixed_size 0\n  .amdhsa_kernarg_size 72\n  .amdhsa_user_sgpr_count 2\n'
        '  .amdhsa_user_sgpr_kernarg_segment_ptr 1\n  .amdhsa_system_sgpr_workgroup_id_x 1\n  .amdhsa_float_denorm_mode_32 3\n.end_amdhsa_kernel\n') % KN
open(sys.argv[1], "w").write(txt)
print("instructions:", a.count)
```

```python
import sys
from isa import Asm, Ins
import sched

KN = "concat_heads__linear_attn_block__sliding_local_dilated__prompt_kernel"
OPT = dict(stamps=0, rot=1, stop=99, prio=0, sleep=4, touch=0, pre=2, pace=1)
for x in sys.argv[2:]:
    k, v = x.split("="); OPT[k] = int(v)
STAMPS = OPT["stamps"]
NTW = " nt" if OPT.get("ntw", 0) else ""
NTX = " nt" if OPT.get("ntx", 0) else ""
ATOM = " sc1" if OPT.get("atomsc1", 1) else ""

WS_FLAG = 0x0
WS_KV = 0x4000
WS_Z = 0xC000
WS_OP = 0x100000
WS_STAMP = 128 << 20
WS_BYTES = 268435456
SLOT = 43008
WOFF = 18432
WO_BASE = 32768
LDS_K = 0
LDS_Z = 16384
LDS_BYTES = 163840
BIG = 0xf149f2ca
EPS = 0x358637bd
LOG2E = 0x3fb8aa3b
NEG_EPS_LOG2E = 0xb5c1a4b9
import struct
def f2u(f): return struct.unpack("<I", struct.pack("<f", f))[0]
import math
LOG2E = f2u(math.log2(math.e)); EPS = f2u(1e-6); BIG = f2u(-1e30)
NEG_EPS_LOG2E = f2u(-1e-6 * math.log2(math.e))
SCALE_C = f2u(0.25 * math.log2(math.e))

sX, sW, sWO, sOUT, sWS, sDBG = 20, 24, 28, 32, 36, 40
sBR, sRT, sHG, sWAVE, sRB, sCT, sLW, sROT = 44, 45, 46, 47, 48, 49, 50, 51
sT0, sT1, sT2, sT3, sT4, sT5 = 52, 53, 54, 55, 56, 57
sX0, sX1, sH, sW0, sW1, sW2, sKC = 58, 59, 60, 61, 62, 63, 64
sM, sCNT, sSAVE = 65, 66, 68
sC0, sC1, sC2, sC3 = 70, 71, 72, 73
sSTB = 76
NSTAMP = 12

a = Asm()

def stamp(i, force=False):
    if OPT.get("bst", 0) and i >= 3 and not force: return
    if STAMPS:
        if OPT.get("clk", 0):
            a("s_memtime s[%d:%d]" % (sSTB + 2 * i, sSTB + 2 * i + 1))
        else:
            a("s_memrealtime s[%d:%d]" % (sSTB + 2 * i, sSTB + 2 * i + 1))

def stamp_wait():
    if STAMPS:
        a("s_waitcnt lgkmcnt(0)")

def srd(d, base, nbytes):
    a("s_mov_b32 s%d, s%d\ns_and_b32 s%d, s%d, 0xffff\ns_mov_b32 s%d, 0x%x\ns_mov_b32 s%d, 0x00020000" % (d, base, d + 1, base + 1, d + 2, nbytes, d + 3))

def vr(b, n=1):
    return "v%d" % b if n == 1 else "v[%d:%d]" % (b, b + n - 1)
def ar(b, n=1):
    return "a%d" % b if n == 1 else "a[%d:%d]" % (b, b + n - 1)

a("s_cmp_ge_u32 s2, 256\ns_cbranch_scc1 L_end")
if STAMPS:
    for i in range(2 * NSTAMP): a("s_mov_b32 s%d, 0" % (sSTB + i))
stamp(0)
a("s_and_b32 s%d, s2, 7" % sT0)
a("s_lshr_b32 s%d, s2, 3" % sT1)
a("s_lshr_b32 s%d, s%d, 2" % (sBR, sT0))
a("s_mul_i32 s%d, s%d, 24" % (sT2, sBR))
a("s_add_u32 s18, s0, s%d\ns_addc_u32 s19, s1, 0" % sT2)
a("s_load_dwordx4 s[4:7], s[18:19], 0")
a("s_load_dwordx2 s[8:9], s[18:19], 16")
a("s_load_dwordx4 s[12:15], s[0:1], 48")
a("s_load_dwordx2 s[16:17], s[0:1], 64")
a("v_lshrrev_b32 v1, 6, v0\nv_and_b32 v0, 63, v0")
a("s_and_b32 s%d, s%d, 1\ns_lshl_b32 s%d, s%d, 3\ns_and_b32 s%d, s%d, 7\ns_add_u32 s%d, s%d, s%d" % (sT2, sT0, sT2, sT2, sT3, sT1, sRT, sT2, sT3))
a("v_readfirstlane_b32 s%d, v1" % sWAVE)
a("s_lshr_b32 s%d, s%d, 1\ns_and_b32 s%d, s%d, 1\ns_lshl_b32 s%d, s%d, 2\ns_lshr_b32 s%d, s%d, 3\ns_add_u32 s%d, s%d, s%d" % (sT2, sT0, sT2, sT2, sT2, sT2, sT4, sT1, sHG, sT2, sT4))
a("s_and_b32 s%d, s%d, 3\ns_lshl_b32 s%d, s%d, 3\ns_lshr_b32 s%d, s%d, 2\ns_add_u32 s%d, s%d, s%d" % (sT2, sT0, sT2, sT2, sT5, sT1, sRB, sT2, sT5))
a("s_and_b32 s%d, s%d, 3" % (sCT, sT1))
if OPT["rot"] == 1:
    a("s_lshl_b32 s%d, s%d, 1\ns_add_u32 s%d, s%d, s%d\ns_and_b32 s%d, s%d, 7" % (sROT, sT4, sROT, sROT, sT3, sROT, sROT))
elif OPT["rot"] == 2:
    a("s_and_b32 s%d, s%d, 1\ns_lshl_b32 s%d, s%d, 2" % (sROT, sT3, sROT, sROT))
else:
    a("s_mov_b32 s%d, 0" % sROT)
a("s_and_b32 s%d, s%d, 3" % (sLW, sWAVE))
def srds_first():
    a("s_waitcnt lgkmcnt(0)")
    stamp(1)
    srd(sX, 4, 2048 * 1024)
    srd(sW, 6, 512 * 3072)
def srds_rest():
    srd(sWO, 8, 512 * 1024)
    srd(sOUT, 12, 2048 * 2048)
    srd(sDBG, 14, 256)
    srd(sWS, 16, WS_BYTES)
a("s_cmp_ge_u32 s%d, 4\ns_cbranch_scc1 L_loader" % sWAVE)

vQ, vK, vKH, vV, vVH = 8, 40, 72, 76, 108
vXR = 112
vWR = 118
vB = 121
vBC, vBP, vBH0, vBH1, vMC = 122, 126, 130, 134, 138
vTMP = 140
aXF, aWF = 0, 36

if OPT.get("touch", 1):
    a("s_lshr_b32 s%d, s2, 3\ns_and_b32 s%d, s%d, 7\ns_lshr_b32 s%d, s%d, 3" % (sT0, sT1, sT0, sT2, sT0))
    a("v_lshrrev_b32 v1, 5, v0\nv_and_b32 v2, 31, v0")
    a("s_lshl_b32 s%d, s%d, 1\ns_add_u32 s%d, s%d, %d\ns_add_u32 s%d, s%d, s%d" % (sT3, sWAVE, sT3, sT3, OPT.get("t0", 1), sT3, sT3, sROT))
    a("v_add_u32 v3, s%d, v1\nv_and_b32 v3, 7, v3" % sT3)
    a("s_lshl_b32 s%d, s%d, 7\ns_lshl_b32 s%d, s%d, 5\ns_add_u32 s%d, s%d, s%d" % (sT4, sRT, sT5, sT2, sT4, sT4, sT5))
    a("v_add_u32 v4, s%d, v2\nv_lshlrev_b32 v4, 10, v4\nv_lshl_add_u32 v4, v3, 7, v4" % sT4)
    a("s_mul_i32 s%d, s%d, 24\nv_min_u32 v5, 23, v2\nv_add_u32 v5, s%d, v5" % (sT4, sT1, sT4))
    a("v_and_b32 v6, 63, v5\nv_lshl_add_u32 v6, v3, 6, v6\nv_mul_u32_u24 v6, 3072, v6\nv_lshrrev_b32 v5, 6, v5\nv_lshl_add_u32 v6, v5, 10, v6")
    a("s_lshl_b32 s%d, s%d, 7\nv_add_u32 v159, s%d, v6\nv_mov_b32 v158, v4" % (sT4, sHG, sT4))
TP = [OPT.get("tp0", 0), OPT.get("tp1", 0), OPT.get("tp2", 0), OPT.get("tp3", 0)]
def touch_at(point):
    if not OPT.get("touch", 1): return
    ws_ = [w for w in range(4) if TP[w] == point]
    if not ws_: return
    lab = a.lab("L_tch")
    if len(ws_) < 4:
        mask = sum(1 << w for w in ws_)
        a("s_lshl_b32 s%d, 1, s%d\ns_and_b32 s%d, s%d, %d\ns_cbranch_scc0 %s" % (sT0, sWAVE, sT0, sT0, mask, lab))
    a("buffer_load_dword v156, v158, s[%d:%d], 0 offen" % (sX, sX + 3))
    a("buffer_load_dword v157, v159, s[%d:%d], 0 offen" % (sW, sW + 3))
    a("%s:" % lab)
def wo_touch(point):
    if point != OPT.get("wotp", 3): return
    lab = a.lab("L_wot")
    a("s_cmp_ge_u32 s%d, 2\ns_cbranch_scc1 %s" % (sWAVE, lab))
    a("s_lshr_b32 s%d, s2, 3\ns_lshl_b32 s%d, s%d, 14\ns_lshl_b32 s%d, s%d, 13\ns_add_u32 s%d, s%d, s%d" % (sT0, sT0, sT0, sT1, sWAVE, sT0, sT0, sT1))
    a("v_lshlrev_b32 v154, 7, v0\nv_add_u32 v154, s%d, v154" % sT0)
    a("buffer_load_dword v155, v154, s[%d:%d], 0 offen" % (sWO, sWO + 3))
    a("%s:" % lab)
if OPT.get("pace", 1): a("s_barrier")
srds_first(); srds_rest()
touch_at(0)
if OPT.get("pace", 1) >= 2: a("s_barrier")
a("v_and_b32 v1, 15, v0\nv_lshrrev_b32 v2, 4, v0")
a("v_lshrrev_b32 v3, 1, v1")
a("v_xor_b32 v4, v3, v2")
a("v_lshlrev_b32 v5, 7, v1\nv_lshl_add_u32 v5, v4, 4, v5")
for s_ in range(3):
    a("v_add_u32 v%d, %d, v5" % (vXR + 2 * s_, s_ * SLOT))
    a("v_xor_b32 v%d, 64, v%d" % (vXR + 2 * s_ + 1, vXR + 2 * s_))
a("v_bfe_u32 v3, v0, 2, 2\nv_and_b32 v4, 3, v0")
a("v_lshl_add_u32 v5, v2, 3, v3\nv_lshlrev_b32 v5, 7, v5")
a("v_lshrrev_b32 v6, 1, v3\nv_and_b32 v7, 1, v2\nv_lshl_or_b32 v6, v7, 1, v6")
a("v_xor_b32 v6, s%d, v6" % sWAVE)
a("v_lshl_add_u32 v5, v6, 5, v5\nv_lshl_add_u32 v5, v4, 3, v5")
for s_ in range(3):
    a("v_add_u32 v%d, %d, v5" % (vWR + s_, s_ * SLOT + WOFF))
a("s_cmp_eq_u32 s%d, 0\ns_cbranch_scc0 L_mainB" % sBR)

def c_of(step): return step >> 1
KVF = OPT.get("kvf", 1)
def geom(br):
    if br == 0 and KVF: return 4, 32768, 16384, (lambda c: (c + 1) % 4)
    return 3, SLOT, WOFF, (lambda c: c % 3)
def main_loop(br, mid=None):
    NT = 9 if br else 8
    two = (br == 0 and KVF)
    NS = 32 if two else 16
    def parts(step):
        if br: return [(vQ, 0, True, False), (vK, 1, True, False), (vV, 2, False, False)]
        if not two: return [(vQ, 0, True, True), (vK, 1, False, True), (vV, 2, False, False)]
        if step < 16: return [(vK, 0, False, True), (vV, 1, False, False)]
        return [(vQ, 0, True, True)]
    lg = []
    NSL, SLB, WOF, slot_of = geom(br)
    if two:
        a("v_subrev_u32 v%d, %d, v%d" % (vWR, WOFF - WOF, vWR))
        a("v_add_u32 v%d, 0x10000, v%d\nv_add_u32 v%d, 0x10000, v%d\nv_add_u32 v%d, 0x10000, v%d" % (vXR + 2, vXR, vXR + 3, vXR + 1, vWR + 1, vWR))
    def rd_x(step, t):
        c, st = step >> 1, step & 1
        s_ = slot_of(c)
        if OPT.get("noxr", 0) and step > 0 and (t & 1): return
        if two: reg, off = vXR + 2 * (s_ >> 1) + st, (s_ & 1) * SLB
        else: reg, off = vXR + 2 * s_ + st, 0
        a("ds_read_b128 %s, v%d offset:%d" % (ar(aXF + 4 * t, 4), reg, off + t * 2048)); lg.append(("x", step, t))
    def rd_w(step, i):
        c, st = step >> 1, step & 1
        s_ = slot_of(c)
        part, rd = i >> 1, i & 1
        if two: reg, off = vWR + (s_ >> 1), (s_ & 1) * SLB
        else: reg, off = vWR + s_, 0
        a("ds_read_b64_tr_b16 %s, v%d offset:%d" % (ar(aWF + 12 * (step & 1) + 4 * part + 2 * rd, 2), reg, off + part * 8192 + st * 4096 + rd * 512)); lg.append(("w", step, i))
    def need(keys):
        last = -1
        for i, k in enumerate(lg):
            if k in keys: last = i
        if last >= 0:
            n = len(lg) - 1 - last
            a("s_waitcnt lgkmcnt(%d)" % min(n, 15))
            if n > 15: n = 15
            del lg[:len(lg) - n]
    if OPT.get("prio1", 0): a("s_setprio %d" % OPT["prio1"])
    a("s_barrier")
    stamp(2)
    touch_at(1)
    for i in range(2 * len(parts(0))): rd_w(0, i)
    for t in range(NT): rd_x(0, t)
    for step in range(NS):
        st = step & 1
        last = step == NS - 1
        first = step == 0 or (two and step == 16)
        P = parts(step)
        pend = [("w", i) for i in range(2 * len(parts(step + 1)))] if not last else []
        deferred = []
        SPREAD = OPT.get("spread", 1)
        def issue(item):
            kind, i = item
            rd_w(step + 1, i) if kind == "w" else rd_x(step + 1, i)
        barrier_done = (st == 0)
        wb = aWF + 12 * (step & 1)
        for t in range(NT):
            keys = [("x", step, t)]
            if t == 0: keys += [("w", step, i) for i in range(2 * len(P))]
            need(keys)
            xf = ar(aXF + 4 * t, 4)
            mf = []
            for (acc, wp, tr, eps) in P:
                if t == 8:
                    if acc == vQ: continue
                    d = vKH if acc == vK else vVH
                else:
                    d = acc + 4 * t
                wf = ar(wb + 4 * wp, 4)
                cop = (vr(vTMP, 4) if eps else "0") if first else vr(d, 4)
                mf.append("v_mfma_f32_16x16x32_bf16 %s, %s, %s, %s" % (vr(d, 4), wf if tr else xf, xf if tr else wf, cop))
            for mi, m in enumerate(mf):
                a(m)
                lastm = mi == len(mf) - 1
                if SPREAD and not lastm and barrier_done and not last and pend:
                    issue(pend.pop(0))
            if st == 1 and t <= 2:
                if not last: deferred.append(("x", t))
                if t == 2:
                    if two and step == 23: a("s_waitcnt vmcnt(0)")
                    a("s_waitcnt lgkmcnt(0)"); del lg[:]
                    if not OPT.get("nobar", 0): a("s_barrier")
                    touch_at(c_of(step) + 2)
                    wo_touch(c_of(step) + 2)
                    if OPT.get("bst", 0) and c_of(step) < 8: stamp(3 + c_of(step), True)
                    barrier_done = True
                    pend = pend + deferred if not last else []
                    if not last:
                        k = 0
                        while k < (2 if SPREAD else 3) and pend:
                            issue(pend.pop(0)); k += 1
                continue
            if last: continue
            if st == 1:
                pend.append(("x", t))
                k = 0
                while k < ((1 if len(mf) > 1 else 2) if SPREAD else 3) and pend:
                    issue(pend.pop(0)); k += 1
            else:
                rd_x(step + 1, t)
                if (not SPREAD or len(mf) == 1) and pend:
                    k = 0
                    while k < (2 if not SPREAD else 1) and pend:
                        issue(pend.pop(0)); k += 1
        while pend:
            issue(pend.pop(0))
        if two and step == 15:
            stamp(3)
            mid()
    a("s_waitcnt vmcnt(0)")
    if not two: stamp(3)
    if OPT.get("bst", 0): stamp(11, True)

def store_op(base0, npairs, first_pair=0):
    pass

def op_store_addr(vd):
    a("v_and_b32 v3, 1, v2\nv_lshlrev_b32 v3, 14, v3")
    a("v_lshrrev_b32 v4, 1, v2\nv_lshl_add_u32 v3, v4, 9, v3\nv_lshl_add_u32 v3, v1, 4, v3")
    a("s_lshl_b32 s%d, s%d, 17" % (sT0, sRT))
    a("s_lshl_b32 s%d, s%d, 11\ns_add_u32 s%d, s%d, s%d" % (sT1, sHG, sT0, sT0, sT1))
    a("s_lshr_b32 s%d, s%d, 1\ns_lshl_b32 s%d, s%d, 10\ns_add_u32 s%d, s%d, s%d" % (sT1, sWAVE, sT1, sT1, sT0, sT0, sT1))
    a("s_and_b32 s%d, s%d, 1\ns_lshl_b32 s%d, s%d, 8\ns_add_u32 s%d, s%d, s%d" % (sT1, sWAVE, sT1, sT1, sT0, sT0, sT1))
    a("s_lshl_b32 s%d, s%d, 21\ns_add_u32 s%d, s%d, s%d\ns_add_u32 s%d, s%d, 0x%x" % (sT1, sBR, sT0, sT0, sT1, sT0, sT0, WS_OP))
    a("v_add_u32 v%d, s%d, v3" % (vd, sT0))

vOPA = 7
vKVA = 6

a("L_mainA:")
a("v_mov_b32 v%d, 0x%x" % (vTMP, EPS))
for i in range(1, 4): a("v_mov_b32 v%d, v%d" % (vTMP + i, vTMP))
op_store_addr(vOPA)
a("s_lshl_b32 s%d, s%d, 2\ns_add_u32 s%d, s%d, s%d" % (sT0, sHG, sT0, sT0, sWAVE))
a("s_lshl_b32 s%d, s%d, 10\ns_add_u32 s%d, s%d, 0x%x" % (sT1, sT0, sT1, sT1, WS_KV))
a("v_lshl_add_u32 v%d, v0, 2, s%d" % (vKVA, sT1))
a("s_lshl_b32 s%d, s%d, 6\ns_add_u32 s%d, s%d, 0x%x" % (sT1, sT0, sT1, sT1, WS_Z))
a("v_lshl_add_u32 v5, v0, 2, s%d" % sT1)
a("s_mov_b32 s%d, 0x%x\ns_mov_b32 s%d, 0x%x\ns_mov_b32 s%d, 0x%x\ns_mov_b32 s%d, 0x%x" % (sC0, LOG2E, sC1, LOG2E, sC2, EPS, sC3, NEG_EPS_LOG2E))
def phi_stream(r0, dst, t0, t1):
    s = []
    for i in (0, 2):
        s.append("v_pk_fma_f32 v[%d:%d], v[%d:%d], s[%d:%d], v[2:3]" % (t0 + i, t0 + i + 1, r0 + i, r0 + i + 1, sC0, sC0 + 1))
    for i in range(4):
        s.append("v_exp_f32_e64 v%d, v%d clamp" % (t0 + i, t0 + i))
    for i in range(4):
        s.append("v_max_f32 v%d, s%d, v%d" % (r0 + i, sC2, r0 + i))
    for i in (0, 2):
        s.append("v_pk_add_f32 v[%d:%d], v[%d:%d], v[%d:%d]" % (r0 + i, r0 + i + 1, r0 + i, r0 + i + 1, t0 + i, t0 + i + 1))
    s.append("v_cvt_pk_bf16_f32 v%d, v%d, v%d" % (dst, r0, r0 + 1))
    s.append("v_cvt_pk_bf16_f32 v%d, v%d, v%d" % (dst + 1, r0 + 2, r0 + 3))
    return s

a("v_mov_b32 v2, s%d\nv_mov_b32 v3, s%d" % (sC3, sC3))
vQP = 144
vKP, vVP = (8, 24) if KVF else (112, 128)
ONES = 72
for i in range(4): a("v_mov_b32 v%d, 0x3f803f80" % (ONES + i))
def k_epilogue():
    for t in range(0, 8, 2):
        s0 = phi_stream(vK + 4 * t, vKP + 2 * t, 108, None)
        s1 = phi_stream(vK + 4 * (t + 1), vKP + 2 * (t + 1), 144, None)
        sv = ["v_cvt_pk_bf16_f32 v%d, v%d, v%d" % (vVP + 2 * tt + i, vV + 4 * tt + 2 * i, vV + 4 * tt + 2 * i + 1) for tt in (t, t + 1) for i in range(2)]
        for x in sched.interleave([s0, s1, sv]): a(x)
        acc_kv, acc_z = 76, 80
        cop = lambda r: "0" if t == 0 else vr(r, 4)
        a("v_mfma_f32_16x16x32_bf16 %s, %s, %s, %s" % (vr(acc_kv, 4), vr(vKP + 2 * t, 4), vr(vVP + 2 * t, 4), cop(acc_kv)))
        a("v_mfma_f32_16x16x32_bf16 %s, %s, %s, %s" % (vr(acc_z, 4), vr(ONES, 4), vr(vKP + 2 * t, 4), cop(acc_z)))
    for r in range(4):
        a("buffer_atomic_add_f32 v%d, v%d, s[%d:%d], 0 offen offset:%d%s" % (76 + r, vKVA, sWS, sWS + 3, r * 256, ATOM))
    a("s_mov_b64 s[%d:%d], exec\ns_mov_b64 exec, 0xffff" % (sSAVE, sSAVE + 1))
    a("buffer_atomic_add_f32 v80, v5, s[%d:%d], 0 offen%s" % (sWS, sWS + 3, ATOM))
    a("s_mov_b64 exec, s[%d:%d]" % (sSAVE, sSAVE + 1))
    stamp(4)
if KVF:
    main_loop(0, k_epilogue)
else:
    main_loop(0)
    k_epilogue()
for t in range(0, 8, 2):
    s0 = phi_stream(vQ + 4 * t, vQP + 2 * t, 108, None)
    s1 = phi_stream(vQ + 4 * (t + 1), vQP + 2 * (t + 1), 84, None)
    for x in sched.interleave([s0, s1]): a(x)
stamp(5)
a("v_lshrrev_b32 v2, 4, v0\nv_lshlrev_b32 v2, 4, v2")
a("s_lshl_b32 s%d, s%d, 2\ns_add_u32 s%d, s%d, s%d\ns_lshl_b32 s%d, s%d, 6\ns_add_u32 s%d, s%d, 0x%x\nv_add_u32 v5, s%d, v2" % (sT0, sHG, sT0, sT0, sWAVE, sT0, sT0, sT0, sT0, WS_Z, sT0))
a("s_mov_b32 s%d, 0x%x" % (sC2, EPS))
if not KVF:
    a("s_waitcnt vmcnt(0)")
    a("s_barrier")
a("s_barrier")
stamp(8)
for r in range(4):
    a("buffer_load_dword v%d, v%d, s[%d:%d], 0 offen offset:%d sc1" % (8 + r, vKVA, sWS, sWS + 3, r * 256))
a("buffer_load_dwordx4 v[12:15], v5, s[%d:%d], 0 offen sc1" % (sWS, sWS + 3))
a("s_waitcnt vmcnt(1)")
a("v_cvt_pk_bf16_f32 v16, v8, v9\nv_cvt_pk_bf16_f32 v17, v10, v11")
a("s_waitcnt vmcnt(0)")
a("v_cvt_pk_bf16_f32 v18, v12, v13\nv_cvt_pk_bf16_f32 v19, v14, v15")
stamp(6)
def ounit(t, T):
    N, DN, rv = T, T + 4, T + 8
    q = vQP + 2 * t
    s = []
    s.append("v_mfma_f32_16x16x16_bf16 %s, v[18:19], %s, 0" % (vr(DN, 4), vr(q, 2)))
    s.append("v_mfma_f32_16x16x16_bf16 %s, v[16:17], %s, 0" % (vr(N, 4), vr(q, 2)))
    s.append("v_add_f32 v%d, s%d, v%d" % (rv, sC2, DN))
    s.append("v_rcp_f32 v%d, v%d" % (rv, rv))
    for r in (0, 2): s.append("v_pk_mul_f32 v[%d:%d], v[%d:%d], v[%d:%d] op_sel_hi:[1,0]" % (N + r, N + r + 1, N + r, N + r + 1, rv, rv + 1))
    s.append("v_cvt_pk_bf16_f32 v%d, v%d, v%d" % (q, N, N + 1))
    s.append("v_cvt_pk_bf16_f32 v%d, v%d, v%d" % (q + 1, N + 2, N + 3))
    return s
for grp in range(2):
    for x in sched.interleave([ounit(4 * grp + i, 24 + 10 * i) for i in range(4)]): a(x)
    for u in (2 * grp, 2 * grp + 1):
        b = vQP + 4 * u
        a("v_permlane16_swap_b32 v%d, v%d\nv_permlane16_swap_b32 v%d, v%d" % (b, b + 2, b + 1, b + 3))
        a("s_mov_b32 s%d, %d" % (sT0, 2 * u * 16384))
        a("buffer_store_dwordx4 %s, v%d, s[%d:%d], s%d offen sc1" % (vr(b, 4), vOPA, sWS, sWS + 3, sT0))
stamp(4, False) if False else None
a("s_waitcnt vmcnt(0)")
a("s_barrier")
a("s_branch L_p2wait")

a("L_mainB:")
op_store_addr(vOPA)
a("v_lshlrev_b32 v3, 2, v2")
a("v_mov_b32 v6, 0x%x" % BIG)
for r in range(4):
    a("v_add_u32 v4, %d, v3" % r)
    a("v_sub_u32 v5, v1, v4")
    a("v_cmp_gt_u32 vcc, 8, v5")
    a("v_cndmask_b32_e64 v%d, v6, 0, vcc" % (vBC + r))
    if r % 2 == 0:
        a("v_cndmask_b32_e64 v%d, 0, -1, vcc\nv_and_b32 v%d, 0xffff, v%d" % (vMC + r // 2, vMC + r // 2, vMC + r // 2))
    else:
        a("v_cndmask_b32_e64 v5, 0, -1, vcc\nv_and_b32 v5, 0xffff0000, v5\nv_or_b32 v%d, v%d, v5" % (vMC + r // 2, vMC + r // 2))
    a("v_sub_u32 v5, v4, v1")
    a("v_cmp_le_i32 vcc, 9, v5")
    a("v_cndmask_b32_e64 v%d, v6, 0, vcc" % (vBP + r))
    a("v_cmp_le_i32 vcc, 1, v5\nv_cndmask_b32_e64 v%d, v6, 0, vcc" % (vBH0 + r))
    a("v_cmp_ge_u32 vcc, 7, v4\nv_cndmask_b32_e64 v%d, v6, v%d, vcc" % (vBH0 + r, vBH0 + r))
    a("v_mov_b32 v%d, v%d" % (vBH1 + r, vBP + r))
a("s_cmp_eq_u32 s%d, 0\ns_cbranch_scc0 L_nomask" % sRT)
for r in range(4):
    a("v_mov_b32 v%d, v6\nv_mov_b32 v%d, v6" % (vBH0 + r, vBH1 + r))
a("L_nomask:")
a("s_mov_b32 s%d, 0x%x\ns_mov_b32 s%d, 0x%x" % (sC0, SCALE_C, sC1, SCALE_C))
main_loop(1)
vVP = 140; vKPb = 76; vQPb = 94
def VP(p, u): return vVP + 10 * p + 2 * (u + 1)
def KP(t): return vKPb + 2 * t
def QP(t): return vQPb + 2 * t
pk = lambda d, s: ["v_cvt_pk_bf16_f32 v%d, v%d, v%d" % (d, s, s + 1), "v_cvt_pk_bf16_f32 v%d, v%d, v%d" % (d + 1, s + 2, s + 3)]
for t in range(8):
    for x in pk(VP(t & 1, t >> 1), vV + 4 * t): a(x)
for x in pk(VP(0, -1), vVH): a(x)
a("v_mov_b32 v%d, v%d\nv_mov_b32 v%d, v%d" % (VP(1, -1), VP(0, -1), VP(1, -1) + 1, VP(0, -1) + 1))
for t in range(8):
    for x in pk(KP(t), vK + 4 * t): a(x)
for x in pk(KP(8), vKH): a(x)
for t in range(8):
    for x in pk(QP(t), vQ + 4 * t): a(x)
ONESB = 110
ONESB = 112
for i in range(4): a("v_mov_b32 v%d, 0x3f803f80" % (ONESB + i))
def unit(t, T):
    p, u = t & 1, t >> 1
    SP, SC, SM, m0, m1 = T, T + 4, T + 8, T + 12, T + 13
    tp = 8 if u == 0 else t - 2
    bias = (vBH0 if p == 0 else vBH1) if u == 0 else vBP
    s = []
    s.append("v_mfma_f32_16x16x16_bf16 %s, %s, %s, %s" % (vr(SP, 4), vr(KP(tp), 2), vr(QP(t), 2), vr(bias, 4)))
    s.append("v_mfma_f32_16x16x16_bf16 %s, %s, %s, %s" % (vr(SC, 4), vr(KP(t), 2), vr(QP(t), 2), vr(vBC, 4)))
    for r in range(4): s.append("v_max_f32 v%d, v%d, v%d" % (SC + r, SC + r, SP + r))
    s.append("v_max3_f32 v%d, v%d, v%d, v%d" % (m0, SC, SC + 1, SC + 2))
    s.append("v_max_f32 v%d, v%d, v%d" % (m0, m0, SC + 3))
    s.append("v_mov_b32 v%d, v%d" % (m1, m0))
    s.append("v_permlane16_swap_b32 v%d, v%d" % (m0, m1))
    s.append("v_max_f32 v%d, v%d, v%d" % (m0, m0, m1))
    s.append("v_mov_b32 v%d, v%d" % (m1, m0))
    s.append("v_permlane32_swap_b32 v%d, v%d" % (m0, m1))
    s.append("v_max_f32 v%d, v%d, v%d" % (m0, m0, m1))
    s.append("v_mul_f32 v%d, s%d, v%d" % (m0, sC0, m0))
    for r in (0, 2): s.append("v_pk_fma_f32 v[%d:%d], v[%d:%d], s[%d:%d], v[%d:%d] op_sel_hi:[1,1,0] neg_lo:[0,0,1] neg_hi:[0,0,1]" % (SC + r, SC + r + 1, SC + r, SC + r + 1, sC0, sC0 + 1, m0, m0 + 1))
    for r in range(4): s.append("v_exp_f32 v%d, v%d" % (SC + r, SC + r))
    s.append("v_cvt_pk_bf16_f32 v%d, v%d, v%d" % (SC, SC, SC + 1))
    s.append("v_cvt_pk_bf16_f32 v%d, v%d, v%d" % (SC + 1, SC + 2, SC + 3))
    s.append("v_and_b32 v%d, v%d, v%d" % (SP + 2, SC, vMC))
    s.append("v_and_b32 v%d, v%d, v%d" % (SP + 3, SC + 1, vMC + 1))
    s.append("v_xor_b32 v%d, v%d, v%d" % (SP, SC, SP + 2))
    s.append("v_xor_b32 v%d, v%d, v%d" % (SP + 1, SC + 1, SP + 3))
    s.append("v_mfma_f32_16x16x32_bf16 %s, %s, %s, 0" % (vr(SM, 4), vr(ONESB, 4), vr(SP, 4)))
    s.append("v_mfma_f32_16x16x32_bf16 %s, %s, %s, 0" % (vr(SC, 4), vr(VP(p, u - 1), 4), vr(SP, 4)))
    s.append("v_rcp_f32 v%d, v%d" % (m0, SM))
    for r in (0, 2): s.append("v_pk_mul_f32 v[%d:%d], v[%d:%d], v[%d:%d] op_sel_hi:[1,0]" % (SC + r, SC + r + 1, SC + r, SC + r + 1, m0, m0 + 1))
    s.append("v_cvt_pk_bf16_f32 v%d, v%d, v%d" % (QP(t), SC, SC + 1))
    s.append("v_cvt_pk_bf16_f32 v%d, v%d, v%d" % (QP(t) + 1, SC + 2, SC + 3))
    return s
for grp in range(2):
    ss = [unit(4 * grp + i, 8 + 16 * i) for i in range(4)]
    for x in sched.interleave(ss): a(x)
    for u in (2 * grp, 2 * grp + 1):
        b = QP(2 * u)
        a("v_permlane16_swap_b32 v%d, v%d\nv_permlane16_swap_b32 v%d, v%d" % (b, b + 2, b + 1, b + 3))
        a("s_mov_b32 s%d, %d" % (sT0, 2 * u * 16384))
        a("buffer_store_dwordx4 %s, v%d, s[%d:%d], s%d offen sc1" % (vr(b, 4), vOPA, sWS, sWS + 3, sT0))
stamp(5)
a("s_waitcnt vmcnt(0)")
a("s_barrier")
a("s_branch L_p2wait")

a("L_loader:")
a("v_lshrrev_b32 v1, 3, v0\nv_and_b32 v2, 7, v0")
vXS, vHS, vWS_, vWOS = 8, 10, 12, 14
a("v_lshrrev_b32 v3, 1, v1")
for mh in range(2):
    a("v_or_b32 v4, %d, v3\nv_xor_b32 v4, v4, v2\nv_lshlrev_b32 v4, 4, v4" % (4 * mh))
    a("v_lshl_add_u32 v4, v1, 11, v4\nv_add_u32 v%d, %d, v4" % (vXS + mh, mh * 16 * 1024))
a("s_lshl_b32 s%d, s%d, 2\nv_add_u32 v4, s%d, v1" % (sT0, sLW, sT0))
a("v_and_b32 v5, 7, v4\nv_lshlrev_b32 v5, 1, v5\nv_lshrrev_b32 v6, 3, v4\nv_add_u32 v5, v5, v6")
a("s_lshl_b32 s%d, s%d, 7\ns_sub_u32 s%d, s%d, 16\nv_add_u32 v5, s%d, v5\nv_max_i32 v5, 0, v5" % (sT0, sRT, sT0, sT0, sT0))
a("v_lshrrev_b32 v6, 1, v4\nv_and_b32 v6, 7, v6\nv_xor_b32 v6, v6, v2\nv_lshlrev_b32 v6, 4, v6\nv_lshl_add_u32 v%d, v5, 10, v6" % vHS)
a("v_and_b32 v4, 1, v3\nv_lshrrev_b32 v5, 1, v2\nv_and_b32 v6, 1, v2")
a("v_mul_u32_u24 v7, 3072, v1")
for kp in range(2):
    a("v_or_b32 v16, %d, v4\nv_xor_b32 v16, v16, v5\nv_lshlrev_b32 v16, 5, v16\nv_lshl_add_u32 v16, v6, 4, v16" % (2 * kp))
    a("v_add_u32 v16, v16, v7\nv_add_u32 v%d, %d, v16" % (vWS_ + kp, kp * 8 * 3072))
srds_first()
def loader_late_setup():
    srds_rest()
    a("v_lshrrev_b32 v3, 4, v0\nv_bfe_u32 v4, v0, 1, 3\nv_and_b32 v5, 1, v0")
    a("s_lshl_b32 s%d, s%d, 8" % (sT0, sCT))
    for b in range(2):
        a("v_or_b32 v6, %d, v3\nv_xor_b32 v6, v6, v4\nv_lshlrev_b32 v6, 5, v6\nv_lshl_add_u32 v6, v5, 4, v6" % (4 * b))
        a("v_lshl_add_u32 v6, v3, 10, v6\nv_add_u32 v%d, s%d, v6" % (vWOS + b, sT0))

    a("v_and_b32 v25, 7, v0\nv_lshlrev_b32 v25, 2, v25\nv_add_u32 v25, 128, v25\nv_mov_b32 v24, 0")


def dma(vaddr, srd_, soff, ldsreg_or_imm):
    a("s_mov_b32 m0, %s" % ldsreg_or_imm)
    a("buffer_load_dwordx4 v%d, s[%d:%d], s%d offen lds" % (vaddr, srd_, srd_ + 3, soff))

def loader(br):
    n = 11 if br else 10
    sLX, sLH, sLWb = 74, 75, 67
    a("s_lshl_b32 s%d, s%d, 12" % (sLX, sLW))
    a("s_lshl_b32 s%d, s%d, 9\ns_add_u32 s%d, s%d, 16384" % (sLH, sLW, sLH, sLH))
    NSL, SLB, WOF, slot_of = geom(br)
    a("s_lshl_b32 s%d, s%d, 11\ns_add_u32 s%d, s%d, %d" % (sLWb, sLW, sLWb, sLWb, WOF))
    a("s_lshl_b32 s%d, s%d, 17\ns_lshl_b32 s%d, s%d, 15\ns_add_u32 s18, s%d, s%d" % (sT0, sRT, sT1, sLW, sT0, sT1))
    a("s_mul_i32 s%d, s%d, %d\ns_lshl_b32 s%d, s%d, 7\ns_add_u32 s19, s%d, s%d" % (sT0, sLW, 16 * 3072, sT1, sHG, sT0, sT1))
    two = (br == 0 and KVF)
    NCH = 16 if two else 8
    def nld(c):
        if br: return 11
        if not two: return 10
        return 8 if c < 8 else 6
    def chunk(c):
        sl = slot_of(c) * SLB
        a("s_add_u32 s%d, s%d, %d\ns_and_b32 s%d, s%d, 7" % (sKC, sROT, c, sKC, sKC))
        a("s_lshl_b32 s%d, s%d, 7" % (sH, sKC))
        a("s_add_u32 s%d, s18, s%d\ns_add_u32 s%d, s%d, 1024" % (sX0, sH, sX1, sX0))
        a("s_mul_i32 s%d, s%d, %d\ns_add_u32 s%d, s19, s%d" % (sW0, sKC, 64 * 3072, sW0, sW0))
        a("s_add_u32 s%d, s%d, 1024\ns_add_u32 s%d, s%d, 2048" % (sW1, sW0, sW2, sW0))
        srcs = (sW0, sW1, sW2) if not two else ((sW1, sW2) if c < 8 else (sW0,))
        def wpart():
          for part, sw in enumerate(srcs):
            for kp in range(2):
                a("s_add_u32 m0, s%d, %d" % (sLWb, sl + part * 8192 + kp * 1024))
                a("buffer_load_dwordx4 v%d, s[%d:%d], s%d offen%s lds" % (vWS_ + kp, sW, sW + 3, sw, NTW))
        xfirst = OPT.get("xfirst", 0) and c >= 1
        if not xfirst: wpart()
        for pp, sx in enumerate((sX0, sX1)):
            for mh in range(2):
                a("s_add_u32 m0, s%d, %d" % (sLX, sl + pp * 2048 + mh * 1024))
                a("buffer_load_dwordx4 v%d, s[%d:%d], s%d offen%s lds" % (vXS + mh, sX, sX + 3, sx, NTX))
        if br:
            a("s_add_u32 m0, s%d, %d" % (sLH, sl))
            a("s_mov_b32 exec_hi, 0")
            a("buffer_load_dwordx4 v%d, s[%d:%d], s%d offen lds" % (vHS, sX, sX + 3, sH))
            a("s_mov_b32 exec_hi, -1")
        if xfirst: wpart()
    def wo(n0, n1):
        for nn in range(n0, n1):
            a("s_lshl_b32 s%d, s%d, 12\ns_add_u32 s%d, s%d, %d" % (sT0, sLW, sT0, sT0, nn * 16384))
            a("s_lshl_b32 s%d, s%d, 10\ns_add_u32 m0, s%d, %d" % (sT1, sLW, sT1, WO_BASE + nn * 4096))
            a("buffer_load_dwordx4 v%d, s[%d:%d], s%d offen lds" % (vWOS + (nn & 1), sWO, sWO + 3, sT0))
    def flag_store(vaddr):
        lab = a.lab("L_nf")
        a("s_cmp_eq_u32 s%d, 0\ns_cbranch_scc0 %s" % (sLW, lab))
        a("s_mov_b64 s[%d:%d], exec\ns_mov_b64 exec, 1" % (sSAVE, sSAVE + 1))
        a("buffer_store_dword v17, v%d, s[%d:%d], 0 offen sc1" % (vaddr, sWS, sWS + 3))
        a("s_mov_b64 exec, s[%d:%d]" % (sSAVE, sSAVE + 1))
        a("%s:" % lab)
    PRE = OPT.get("preA" if br == 0 else "preB", OPT.get("pre", 2))
    L = NCH - 1
    issued = []
    def do_chunk(c):
        chunk(c); issued.extend([("ch", c)] * nld(c))
    def do_wo(n0, n1):
        wo(n0, n1); issued.extend([("wo", n0)] * (n1 - n0))
    def wait_for(tag):
        last = max(i for i, t in enumerate(issued) if t == tag)
        a("s_waitcnt vmcnt(%d)" % (len(issued) - 1 - last))
    do_chunk(0)
    if OPT.get("pace", 1): a("s_barrier")
    if PRE >= 2: do_chunk(1)
    if OPT.get("pace", 1) >= 2: a("s_barrier")
    if PRE >= 3: do_chunk(2)
    loader_late_setup()
    def init_duty():
        if br == 0:
            a("s_cmp_eq_u32 s%d, 0\ns_cbranch_scc0 L_noinit" % sRT)
            a("s_lshl_b32 s%d, s%d, 2\ns_add_u32 s%d, s%d, s%d" % (sT0, sHG, sT0, sT0, sLW))
            a("s_lshl_b32 s%d, s%d, 10\ns_add_u32 s%d, s%d, 0x%x" % (sT1, sT0, sT1, sT1, WS_KV))
            a("v_lshl_add_u32 v16, v0, 4, s%d" % sT1)
            a("v_mov_b32 v20, 0\nv_mov_b32 v21, 0\nv_mov_b32 v22, 0\nv_mov_b32 v23, 0")
            a("buffer_store_dwordx4 v[20:23], v16, s[%d:%d], 0 offen sc1" % (sWS, sWS + 3))
            a("s_lshl_b32 s%d, s%d, 6\ns_add_u32 s%d, s%d, 0x%x" % (sT1, sT0, sT1, sT1, WS_Z))
            a("s_lshl_b32 s%d, s%d, 8\ns_add_u32 s%d, s%d, %d\ns_sub_u32 s%d, s%d, 64" % (sT2, sT0, sT2, sT2, WS_FLAG, sT2, sT2))
            a("v_lshl_add_u32 v17, v0, 4, s%d\nv_lshl_add_u32 v18, v0, 4, s%d" % (sT1, sT2))
            a("s_lshl_b32 s%d, s%d, 8\ns_add_u32 s%d, s%d, %d\nv_lshl_add_u32 v19, v0, 4, s%d" % (sT2, sHG, sT2, sT2, WS_FLAG + 32 * 256 - 20 * 16, sT2))
            a("v_cmp_gt_u32 vcc, 4, v0\nv_cndmask_b32 v17, v18, v17, vcc")
            a("v_cmp_gt_u32 vcc, 20, v0\nv_cndmask_b32 v17, v19, v17, vcc")
            a("s_mov_b64 s[%d:%d], exec\ns_mov_b64 exec, 0xffffff" % (sSAVE, sSAVE + 1))
            a("buffer_store_dwordx4 v[20:23], v17, s[%d:%d], 0 offen sc1" % (sWS, sWS + 3))
            a("s_mov_b64 exec, s[%d:%d]" % (sSAVE, sSAVE + 1))
            a("L_noinit:")
    init_duty()
    a("s_lshl_b32 s%d, s%d, 8\ns_lshl_b32 s%d, s%d, 2\ns_add_u32 s%d, s%d, s%d\ns_add_u32 s%d, s%d, %d" % (sT0, sRT, sT1, sHG, sT0, sT0, sT1, sT0, sT0, WS_FLAG + br * 4096))
    a("v_mov_b32 v16, s%d\nv_mov_b32 v17, 1" % sT0)
    if br == 0:
        a("s_lshl_b32 s%d, s%d, 8\ns_add_u32 s%d, s%d, %d\ns_lshl_b32 s%d, s%d, 2\ns_add_u32 s%d, s%d, s%d" % (sT0, sHG, sT0, sT0, WS_FLAG + 32 * 256, sT1, sRT, sT1, sT0, sT1))
        a("v_mov_b32 v18, s%d\nv_and_b32 v19, 15, v0\nv_lshl_add_u32 v19, v19, 2, s%d" % (sT1, sT0))
    AH = NSL - 1
    INI = 6 if two else L
    for c in range(NCH):
        if not (OPT.get("nodma", 0) and c >= 3): wait_for(("ch", c))
        if c == INI + (1 if two else 0):
            lab = a.lab("L_ini")
            a("s_cmp_eq_u32 s%d, 0\ns_cbranch_scc0 %s_x" % (sLW, lab))
            a("s_mov_b32 s%d, 0" % sCNT)
            a("%s:" % lab)
            a("v_cmp_eq_u32 vcc, 1, v24\ns_cmp_eq_u64 vcc, -1\ns_cbranch_scc1 %s_x" % lab)
            a("s_add_u32 s%d, s%d, 1\ns_cmp_gt_u32 s%d, 100000\ns_cbranch_scc1 %s_x" % (sCNT, sCNT, sCNT, lab))
            a("buffer_load_dword v24, v25, s[%d:%d], 0 offen sc1\ns_waitcnt vmcnt(0)\ns_branch %s" % (sDBG, sDBG + 3, lab))
            a("%s_x:" % lab)
        if c == 0 or not OPT.get("nobar", 0): a("s_barrier")
        if c == PRE and br == 0:
            lab = a.lab("L_ifl")
            a("s_cmp_eq_u32 s%d, 0\ns_cbranch_scc0 %s\ns_cmp_eq_u32 s%d, 0\ns_cbranch_scc0 %s" % (sRT, lab, sLW, lab))
            a("s_lshl_b32 s%d, s%d, 2\ns_add_u32 s%d, s%d, 128\nv_mov_b32 v20, s%d\nv_mov_b32 v21, 1" % (sT0, sHG, sT0, sT0, sT0))
            a("s_mov_b64 s[%d:%d], exec\ns_mov_b64 exec, 1" % (sSAVE, sSAVE + 1))
            a("buffer_store_dword v21, v20, s[%d:%d], 0 offen sc1" % (sDBG, sDBG + 3))
            a("s_mov_b64 exec, s[%d:%d]" % (sSAVE, sSAVE + 1))
            a("%s:" % lab)
        if two and c == 12: flag_store(18)
        if c == 4:
            lab = a.lab("L_dbg")
            a("s_cmp_eq_u32 s%d, 0\ns_cbranch_scc0 %s" % (sLW, lab))
            a("buffer_load_dword v24, v25, s[%d:%d], 0 offen sc1" % (sDBG, sDBG + 3))
            a("%s:" % lab)
        if c == 0:
            for cc in range(PRE, NSL): do_chunk(cc)
        if 1 <= c and c + AH <= L and not OPT.get("nodma", 0): do_chunk(c + AH)
        if two:
            if c == L - 3: do_wo(24, 32)
            if c == L - 2: do_wo(0, 8)
            if c == L - 1: do_wo(8, 16)
            if c == L: do_wo(16, 24)
        else:
            if c == L - 2: do_wo(24, 32)
            if c == L - 1: do_wo(13, 24)
            if c == L: do_wo(0, 2)
    if not OPT.get("nobar", 0): a("s_barrier")
    if br == 0:
        if not two:
            a("s_barrier")
            flag_store(18)
        lab = a.lab("L_kp")
        a("s_cmp_eq_u32 s%d, 0\ns_cbranch_scc1 %s_p" % (sLW, lab))
        if not two: wo(2, 13)
        a("s_branch %s_x" % lab)
        a("%s_p:\ns_mov_b32 s%d, 0" % (lab, sCNT))
        stamp(3)
        a("%s:" % lab)
        a("buffer_load_dword v20, v19, s[%d:%d], 0 offen sc1\ns_waitcnt vmcnt(0)" % (sWS, sWS + 3))
        a("v_cmp_eq_u32 vcc, 1, v20\ns_cmp_eq_u64 vcc, -1\ns_cbranch_scc1 %s_x" % lab)
        a("s_add_u32 s%d, s%d, 1\ns_cmp_gt_u32 s%d, 100000\ns_cbranch_scc1 %s_x" % (sCNT, sCNT, sCNT, lab))
        if OPT["sleep"]: a("s_sleep %d" % OPT["sleep"])
        a("s_branch %s" % lab)
        a("%s_x:" % lab)
        a("s_barrier")
        if not two:
            a("s_cmp_eq_u32 s%d, 0\ns_cbranch_scc0 %s_y" % (sLW, lab))
            wo(2, 13)
            a("%s_y:" % lab)
    elif not OPT.get("wolate", 0):
        wo(2, 13)
    a("s_barrier")
    stamp(5)
    flag_store(16)
    if br and OPT.get("wolate", 0): wo(2, 13)
    a("s_branch L_p2wait")

def poll(br):
    lab = a.lab("L_fl")
    a("s_cmp_eq_u32 s%d, 4\ns_cbranch_scc0 %s_x" % (sWAVE, lab))
    a("s_mov_b32 s%d, 0" % sCNT)
    a("s_lshr_b32 s%d, s%d, 1\ns_lshl_b32 s%d, s%d, 8\ns_lshl_b32 s%d, s%d, 12\ns_add_u32 s%d, s%d, s%d" % (sT0, sRB, sT0, sT0, sT1, sBR, sT0, sT0, sT1))
    if WS_FLAG: a("s_add_u32 s%d, s%d, %d" % (sT0, sT0, WS_FLAG))
    a("v_and_b32 v60, 7, v0\nv_lshl_add_u32 v60, v60, 2, s%d" % sT0)
    a("%s:" % lab)
    a("buffer_load_dword v61, v60, s[%d:%d], 0 offen sc1\ns_waitcnt vmcnt(0)" % (sWS, sWS + 3))
    a("v_cmp_eq_u32 vcc, 1, v61")
    a("s_cmp_eq_u64 vcc, -1\ns_cbranch_scc1 %s_x" % lab)
    a("s_add_u32 s%d, s%d, 1\ns_cmp_gt_u32 s%d, 100000\ns_cbranch_scc1 %s_x" % (sCNT, sCNT, sCNT, lab))
    if OPT["sleep"]: a("s_sleep %d" % OPT["sleep"])
    a("s_branch %s" % lab)
    a("%s_x:" % lab)

a("s_cmp_eq_u32 s%d, 0\ns_cbranch_scc0 L_loaderB" % sBR)
loader(0)
a("L_loaderB:")
loader(1)

a("L_p2wait:")
a("s_cmp_ge_u32 s%d, 4\ns_cbranch_scc1 L_p2load" % sWAVE)
vACC, vOPF, vWA, vOUT, vOPR = 8, 40, 72, 76, 77
a("v_and_b32 v1, 15, v0\nv_lshrrev_b32 v2, 4, v0")
a("v_bfe_u32 v3, v0, 2, 2\nv_and_b32 v4, 3, v0\nv_and_b32 v5, 1, v2")
a("v_lshl_or_b32 v6, v5, 2, v3\nv_lshlrev_b32 v6, 5, v6\nv_lshl_add_u32 v6, v4, 3, v6")
a("v_lshrrev_b32 v7, 1, v2\nv_lshlrev_b32 v7, 3, v7\nv_lshl_add_u32 v7, v5, 4, v7\nv_add_u32 v7, v7, v3")
a("v_lshl_add_u32 v6, v7, 8, v6\nv_add_u32 v6, %d, v6" % WO_BASE)
a("s_lshl_b32 s%d, s%d, 6\nv_xor_b32 v%d, s%d, v6\nv_xor_b32 v%d, 32, v%d" % (sT0, sWAVE, vWA, sT0, vWA + 1, vWA))
a("v_add_u32 v%d, 0x10000, v%d\nv_add_u32 v%d, 0x10000, v%d" % (vWA + 2, vWA, vWA + 3, vWA + 1))
def WF(c, j):
    i = c * 16 + j
    return ("a", 4 * i) if i < 24 else ("v", 112 + 4 * (i - 24))
def wfr(c, j, o, n):
    k, b = WF(c, j)
    return (ar if k == "a" else vr)(b + o, n)
a("s_barrier")
for j in range(16):
    for c in range(2):
        for rd in range(2):
            a("ds_read_b64_tr_b16 %s, v%d offset:%d" % (wfr(c, j, 2 * rd, 2), vWA + c + 2 * (j >> 3), (j & 7) * 8192 + rd * 1024))
a("s_lshl_b32 s%d, s%d, 17\ns_lshl_b32 s%d, s%d, 10\ns_add_u32 s%d, s%d, s%d\ns_lshl_b32 s%d, s%d, 8\ns_add_u32 s%d, s%d, s%d\ns_lshl_b32 s%d, s%d, 6\ns_add_u32 s%d, s%d, s%d" % (sT2, sRB, sT3, sBR, sT2, sT2, sT3, sT3, sCT, sT2, sT2, sT3, sT3, sWAVE, sT2, sT2, sT3))
a("v_lshlrev_b32 v3, 12, v1\nv_and_b32 v4, 1, v2\nv_lshl_add_u32 v3, v4, 5, v3\nv_lshrrev_b32 v4, 1, v2\nv_lshl_add_u32 v3, v4, 4, v3\nv_add_u32 v%d, s%d, v3" % (vOUT, sT2))
a("v_lshlrev_b32 v%d, 4, v0" % vOPR)
a("s_mov_b32 s%d, 2048\ns_mov_b32 s%d, 0x10000\ns_mov_b32 s%d, 0x10800" % (sT3, sT4, sT5))
ALL8 = OPT.get("all8", 0)
def op_src_setup(vd, srg):
    a("s_lshl_b32 s%d, s%d, 2\ns_add_u32 s%d, s%d, s%d\ns_lshl_b32 s%d, s%d, 14\ns_lshl_b32 s%d, s%d, 21\ns_add_u32 s%d, s%d, s%d\ns_add_u32 s%d, s%d, 0x%x" % (sT2, sRB, sT2, sT2, srg, sT2, sT2, sT0, sBR, sT2, sT2, sT0, sT2, sT2, WS_OP))
    a("v_lshl_add_u32 v%d, v0, 4, s%d" % (vd, sT2))
    a("s_lshl_b32 s%d, s%d, 14" % (sM, srg))
def op_dma(vd, js):
    for j in js:
        a("s_add_u32 m0, s%d, %d\ns_mov_b32 s%d, %d" % (sM, j * 1024, sT2, j * 1024))
        a("buffer_load_dwordx4 v%d, s[%d:%d], s%d offen sc1 lds" % (vd, sWS, sWS + 3, sT2))
if ALL8: op_src_setup(78, sWAVE)
a("s_waitcnt lgkmcnt(0)")
a("s_barrier")
stamp(7)
if ALL8: op_dma(78, range(0, 16, 2))
dq = sched.DsQueue(a)
def op_read(j):
    return ["ds_read_b128 %s, v%d offset:%d" % (vr(vOPF + 16 * (j & 1) + 4 * rg, 4), vOPR, rg * 16384 + j * 1024) for rg in range(4)]
GRP = [0, 4, 8, 12]
if ALL8: a("s_waitcnt vmcnt(6)")
a("s_barrier")
for x in op_read(0): dq(x)
for j in range(16):
    nxt = []
    if j < 15:
        if (j + 1) in GRP:
            if ALL8: a("s_waitcnt vmcnt(%d)" % (6 - 2 * GRP.index(j + 1)))
            a("s_barrier")
        nxt = op_read(j + 1)
    for rg in range(4):
        for c in range(2):
            dq("v_mfma_f32_16x16x32_bf16 %s, %s, %s, %s" % (vr(vACC + 8 * rg + 4 * c, 4), wfr(c, j, 0, 4), vr(vOPF + 16 * (j & 1) + 4 * rg, 4), "0" if j == 0 else vr(vACC + 8 * rg + 4 * c, 4)))
        if nxt: dq(nxt[rg])
stamp(9)
for rg in range(4):
    b = 40 + 4 * rg
    for c in range(2):
        r0 = vACC + 8 * rg + 4 * c
        a("v_cvt_pk_bf16_f32 v%d, v%d, v%d\nv_cvt_pk_bf16_f32 v%d, v%d, v%d" % (b + 2 * c, r0, r0 + 1, b + 2 * c + 1, r0 + 2, r0 + 3))
    a("v_permlane16_swap_b32 v%d, v%d\nv_permlane16_swap_b32 v%d, v%d" % (b, b + 2, b + 1, b + 3))
    a("buffer_store_dwordx4 %s, v%d, s[%d:%d], %s offen%s" % (vr(b, 4), vOUT, sOUT, sOUT + 3, ["0", "s%d" % sT3, "s%d" % sT4, "s%d" % sT5][rg], ["", " sc1", " nt", " sc0 sc1", " sc1 nt"][OPT.get("outst", 1)]))
a("s_branch L_fin")

a("L_p2load:")
op_src_setup(8, sLW)
a("s_waitcnt vmcnt(0)")
a("s_barrier")
stamp(4)
poll(0)
a("s_barrier")
stamp(7)
if OPT.get("regst", 0):
    a("v_lshlrev_b32 v9, 4, v0\nv_add_u32 v9, s%d, v9" % sM)
    a("s_movk_i32 s%d, 0x1000\ns_movk_i32 s%d, 0x2000\ns_movk_i32 s%d, 0x3000" % (sT3, sT4, sT5))
    for j in range(16):
        a("buffer_load_dwordx4 %s, v8, s[%d:%d], %s offen offset:%d sc1" % (vr(12 + 4 * j, 4), sWS, sWS + 3, ["0", "s%d" % sT3, "s%d" % sT4, "s%d" % sT5][j >> 2], (j & 3) * 1024))
else:
    op_dma(8, range(1, 16, 2) if ALL8 else range(16))
for g in range(4):
    if OPT.get("regst", 0):
        for j in range(4 * g, 4 * g + 4):
            a("s_waitcnt vmcnt(%d)" % (15 - j))
            a("ds_write_b128 v9, %s offset:%d" % (vr(12 + 4 * j, 4), j * 1024))
        a("s_waitcnt lgkmcnt(0)")
    else:
        a("s_waitcnt vmcnt(%d)" % ((6 - 2 * g) if ALL8 else (12 - 4 * g)))
    a("s_barrier")
    if g == 0: stamp(8)
    if g == 3: stamp(9)
a("L_fin:")
if STAMPS:
    stamp(10)
    a("s_waitcnt vmcnt(0)")
    stamp(11)
    a("s_waitcnt lgkmcnt(0)")
    if STAMPS == 3:
        a("s_cmp_eq_u32 s2, %d\ns_cbranch_scc0 L_end\ns_cmp_eq_u32 s%d, 0\ns_cbranch_scc0 L_end" % (OPT.get("ampwg", 0), sWAVE))
        a("s_sub_u32 s%d, s%d, s%d\ns_mul_i32 s%d, s%d, %d" % (sT0, sSTB + 2 * OPT["ampb"], sSTB + 2 * OPT["ampa"], sT0, sT0, OPT["amp"]))
        a("s_add_u32 s%d, s%d, s%d" % (sT0, sT0, sSTB + 22))
        a("s_mov_b32 s%d, 0" % sCNT)
        a("L_amp:\ns_memrealtime s[%d:%d]\ns_waitcnt lgkmcnt(0)\ns_add_u32 s%d, s%d, 1\ns_cmp_gt_u32 s%d, 200000\ns_cbranch_scc1 L_end" % (sT2, sT3, sCNT, sCNT, sCNT))
        a("s_sub_u32 s%d, s%d, s%d\ns_cmp_lt_i32 s%d, 0\ns_cbranch_scc1 L_amp\ns_branch L_end" % (sT1, sT2, sT0, sT1))
    if STAMPS == 2:
        a("s_and_b32 s%d, s%d, 3\ns_cmp_eq_u32 s%d, 0\ns_cbranch_scc0 L_end" % (sT0, sWAVE, sT0))
        a("s_mov_b64 exec, 1")
        a("s_not_b32 s%d, s%d" % (sSTB, sSTB))
        for j in range(NSTAMP):
            a("v_mov_b32 v6, s%d\nv_mov_b32 v5, %d" % (sSTB + 2 * j, 4 * j))
            a("buffer_atomic_umax v6, v5, s[%d:%d], 0 offen sc1" % (sDBG, sDBG + 3))
        a("s_lshl_b32 s%d, s%d, 2\ns_add_u32 s%d, s%d, 48\nv_mov_b32 v5, s%d\nv_mov_b32 v6, s%d" % (sT0, sBR, sT0, sT0, sT0, sSTB + 22))
        a("buffer_atomic_umax v6, v5, s[%d:%d], 0 offen sc1" % (sDBG, sDBG + 3))
        a("s_branch L_end")
    a("s_and_b32 s%d, s%d, 3\ns_cmp_eq_u32 s%d, 0\ns_cbranch_scc0 L_end" % (sT0, sWAVE, sT0))
    a("s_lshr_b32 s%d, s%d, 2\ns_lshl_b32 s%d, s2, 1\ns_add_u32 s%d, s%d, s%d\ns_mul_i32 s%d, s%d, %d\ns_add_u32 s%d, s%d, 0x%x" % (sT0, sWAVE, sT1, sT0, sT0, sT1, sT0, sT0, NSTAMP * 8, sT0, sT0, WS_STAMP))
    a("v_mov_b32 v5, s%d" % sT0)
    for j in range(NSTAMP):
        a("v_mov_b32 v6, s%d\nv_mov_b32 v7, s%d" % (sSTB + 2 * j, sSTB + 2 * j + 1))
        a("buffer_store_dwordx2 v[6:7], v5, s[%d:%d], 0 offen offset:%d" % (sWS, sWS + 3, 8 * j))
a("L_end:\ns_endpgm")

body = a.finalize()
hdr = open("concat_heads__linear_attn_block__sliding_local_dilated__prompt.s.ref").read().split("; Override launch")[0]
txt = hdr + "; @launch grid=(256,1,1) block=(512,1,1) lds=%d\n" % LDS_BYTES
txt += '.amdgcn_target "amdgcn-amd-amdhsa--gfx950"\n.text\n.globl %s\n.p2align 8\n.type %s,@function\n%s:\n' % (KN, KN, KN)
txt += body
txt += ('.section .rodata,"a"\n.p2align 6\n.amdhsa_kernel %s\n  .amdhsa_next_free_vgpr 256\n  .amdhsa_next_free_sgpr 102\n'
        '  .amdhsa_accum_offset 160\n  .amdhsa_group_segment_fixed_size 0\n  .amdhsa_kernarg_size 72\n  .amdhsa_user_sgpr_count 2\n'
        '  .amdhsa_user_sgpr_kernarg_segment_ptr 1\n  .amdhsa_system_sgpr_workgroup_id_x 1\n  .amdhsa_float_denorm_mode_32 3\n.end_amdhsa_kernel\n') % KN
open(sys.argv[1], "w").write(txt)
print("instructions:", a.count)
```
